```python
import torch

def _softmax(x, axis=-1):
    return torch.softmax(x, dim=axis)
def _gelu(x):
    return torch.nn.functional.gelu(x, approximate="tanh")
def _silu(x):
    return torch.nn.functional.silu(x)
def _sigmoid(x):
    return torch.sigmoid(x)
def _layernorm(x, axis=-1, eps=1e-5):
    m = x.mean(dim=axis, keepdim=True)
    v = x.var(dim=axis, keepdim=True, unbiased=False)
    return (x - m) / torch.sqrt(v + eps)
def _scatter_add(tgt, idx, src, axis=0):
    return tgt.clone().index_add_(axis, idx, src)
def _segment_sum(src, seg, n):
    out = torch.zeros((n,) + src.shape[1:], dtype=src.dtype)
    return out.index_add_(0, seg, src)
def _pad(x, pw):
    flat = tuple(v for pair in reversed(pw) for v in pair)
    return torch.nn.functional.pad(x, flat)

kernel_name = 'gated_mix__linear_kernel_hedgehog__dense_activation_gelu__prompt'

def setup_inputs():

    _w = (lambda a: (lambda t: t.to(torch.bfloat16) if t.is_floating_point() else t)(torch.as_tensor(a)))
    def _A_setup():
        B, S, D, H = 1, 2048, 448, 16
        Dh = D // H
        return {
            "x": _w((lambda *s: torch.randn(*s, dtype=torch.bfloat16) * 0.05)(B, S, D)),
            "wqkv": _w((lambda *s: torch.randn(*s, dtype=torch.bfloat16) * 0.8)(D, 3 * D)),
            "w_phi": _w((lambda *s: torch.randn(*s, dtype=torch.bfloat16) * 0.8)(H, Dh, Dh) * (Dh ** -0.5)),
            "wo": _w((lambda *s: torch.randn(*s, dtype=torch.bfloat16) * 0.05)(D, D)),
        }
    _A_in = _A_setup()

    def _B_setup():
        B, S, D, F = 1, 2048, 448, 1792
        return {
            "x": _w((lambda *s: torch.randn(*s, dtype=torch.bfloat16) * 0.05)(B, S, D)),
            "w1": _w((lambda *s: torch.randn(*s, dtype=torch.bfloat16) * 3.2)(D, F) * (D ** -0.5)),
            "b1": _w((lambda *s: torch.randn(*s, dtype=torch.bfloat16) * 3.2)(F) * 0.01),
            "w2": _w((lambda *s: torch.randn(*s, dtype=torch.bfloat16) * 0.2)(F, D) * (F ** -0.5)),
            "b2": _w((lambda *s: torch.randn(*s, dtype=torch.bfloat16) * 0.4)(D) * 0.01),
        }
    _B_in = _B_setup()

    return {
        "A_x": _A_in["x"],
        "A_wqkv": _A_in["wqkv"],
        "A_w_phi": _A_in["w_phi"],
        "A_wo": _A_in["wo"],
        "B_x": _B_in["x"],
        "B_w1": _B_in["w1"],
        "B_b1": _B_in["b1"],
        "B_w2": _B_in["w2"],
        "B_b2": _B_in["b2"],
        "gate_w": _w((lambda *s: torch.randn(*s, dtype=torch.bfloat16) * 0.05)(448) * 16.0),
    }

def reference(A_x, A_wqkv, A_w_phi, A_wo, B_x, B_w1, B_b1, B_w2, B_b2, gate_w):
    def _A_ref(x, wqkv, w_phi, wo):
        B, S, D = x.shape
        H = 16; Dh = D // H
        qkv = (lambda x, *d: x.permute(*d))((x @ wqkv).reshape(B, S, 3, H, Dh), 2, 0, 3, 1, 4)
        q, k, v = qkv[0], qkv[1], qkv[2]
        pq = torch.einsum("bhsd,hdf->bhsf", q, w_phi)
        pk = torch.einsum("bhsd,hdf->bhsf", k, w_phi)
        phi_q = torch.concatenate([_softmax(pq, axis=-1), _softmax(-pq, axis=-1)], axis=-1)
        phi_k = torch.concatenate([_softmax(pk, axis=-1), _softmax(-pk, axis=-1)], axis=-1)
        kv = torch.einsum("bhsf,bhsd->bhfd", phi_k, v)
        z  = torch.einsum("bhsf->bhf", phi_k)
        num = torch.einsum("bhqf,bhfd->bhqd", phi_q, kv)
        den = torch.einsum("bhqf,bhf->bhq", phi_q, z)[..., None] + 1e-6
        o = num / den
        return (lambda x, *d: x.permute(*d))(o, 0, 2, 1, 3).reshape(B, S, D) @ wo

    def _B_ref(x, w1, b1, w2, b2):
        h = torch.einsum("bsd,df->bsf", x, w1) + b1
        h = _gelu(h)
        return torch.einsum("bsf,fd->bsd", h, w2) + b2

    x = A_x
    g = _sigmoid((x * gate_w).sum(-1, keepdims=True))
    a = _A_ref(x, A_wqkv, A_w_phi, A_wo)
    b = _B_ref(x, B_w1, B_b1, B_w2, B_b2)
    return g * a + (1 - g) * b
```

```python
import re

def v(a, n=1):
    return f"v{a}" if n == 1 else f"v[{a}:{a+n-1}]"
def s(a, n=1):
    return f"s{a}" if n == 1 else f"s[{a}:{a+n-1}]"

_reg_re = re.compile(r"^(-|abs\()?([vsa])(?:(\d+)|\[(\d+):(\d+)\])\)?$")

def regs_of(op):
    op = op.strip()
    if op == "vcc": return {("s", "vcc")}
    if op == "exec": return {("s", "exec")}
    if op == "m0": return {("s", "m0")}
    m = _reg_re.match(op)
    if not m: return set()
    k = m.group(2)
    if m.group(3) is not None:
        return {(k, int(m.group(3)))}
    return {(k, i) for i in range(int(m.group(4)), int(m.group(5)) + 1)}

TRANS = ("v_exp_f32", "v_log_f32", "v_rcp_f32", "v_rsq_f32", "v_sqrt_f32", "v_sin_f32", "v_cos_f32")

class Ins:
    __slots__ = ("op", "args", "mods", "text", "kind", "wr", "rd", "passes", "srcC", "srcAB", "states", "stdata")
    def __init__(self, op, args, mods=""):
        self.op, self.args, self.mods = op, list(args), mods
        self.text = op + (" " + ", ".join(self.args) if self.args else "") + (" " + mods if mods else "")
        self.passes = 0; self.srcC = set(); self.srcAB = set(); self.states = 1; self.stdata = set()
        a = self.args
        R = lambda xs: set().union(*[regs_of(x) for x in xs]) if xs else set()
        if op.startswith("v_mfma"):
            self.kind = "mfma"
            self.passes = 8 if "32x32x16" in op else 4
            self.wr = R(a[:1]); self.srcAB = R(a[1:3]); self.srcC = R(a[3:4]); self.rd = self.srcAB | self.srcC
        elif op.startswith("v_cmp"):
            self.kind = "valu"; self.wr = R(a[:1]); self.rd = R(a[1:])
        elif op in ("v_readfirstlane_b32", "v_readlane_b32"):
            self.kind = "valu"; self.wr = R(a[:1]); self.rd = R(a[1:])
        elif op.startswith("v_permlane") and "swap" in op:
            self.kind = "valu"; self.wr = R(a[:2]); self.rd = R(a[:2])
        elif op.startswith("v_"):
            self.kind = "valu"; self.wr = R(a[:1]); self.rd = R(a[1:])
            if op.startswith("v_fmac") or op.startswith("v_dot2c") or "writelane" in op: self.rd |= self.wr
            if op.startswith("v_add_co") or op.startswith("v_addc_co") or op.startswith("v_sub_co"):
                self.wr = R(a[:2]); self.rd = R(a[2:])
        elif op.startswith("ds_read") or op.startswith("ds_bpermute") or op.startswith("ds_swizzle"):
            self.kind = "ds"; self.wr = R(a[:1]); self.rd = R(a[1:])
        elif op.startswith("ds_"):
            self.kind = "ds"; self.wr = set(); self.rd = R(a)
        elif op.startswith("buffer_load") or op.startswith("global_load"):
            self.kind = "vmem"
            if " lds" in (" " + mods) or "_lds_" in op:
                self.wr = set(); self.rd = R(a) | {("s", "m0")}
            else:
                self.wr = R(a[:1]); self.rd = R(a[1:])
                if "d16" in op: self.rd |= self.wr
        elif op.startswith("buffer_store") or op.startswith("buffer_atomic"):
            self.kind = "vmem"; self.wr = set(); self.rd = R(a)
            if "sc0" in mods and "atomic" in op: self.wr = R(a[:1])
            if op.endswith("x4") or op.endswith("x3"): self.stdata = R(a[:1])
        elif op.startswith("global_store") or op.startswith("global_atomic"):
            self.kind = "vmem"; self.wr = set(); self.rd = R(a)
            if op.endswith("x4") or op.endswith("x3"): self.stdata = R(a[1:2])
        elif op.startswith("buffer_"):
            self.kind = "vmem"; self.wr = set(); self.rd = set()
        elif op == "s_nop":
            self.kind = "salu"; self.wr = set(); self.rd = set(); self.states = int(a[0]) + 1
        elif op.startswith("s_load") or op.startswith("s_mem"):
            self.kind = "smem"; self.wr = R(a[:1]); self.rd = R(a[1:])
        elif op.startswith("s_cmp") or op.startswith("s_cbranch") or op in ("s_branch", "s_barrier", "s_waitcnt", "s_endpgm", "s_sleep", "s_setprio"):
            self.kind = "salu"; self.wr = set(); self.rd = R(a)
        elif op.startswith("s_"):
            self.kind = "salu"; self.wr = R(a[:1]); self.rd = R(a[1:])
            if "saveexec" in op: self.wr |= {("s", "exec")}
        else:
            raise ValueError("unknown op " + op)

def need_states(p, c):
    n = 0
    vw = {r for r in p.wr if r[0] in "va"}
    sw = {r for r in p.wr if r[0] == "s"}
    if p.kind == "valu":
        if c.kind == "mfma" and vw & c.rd: n = max(n, 2)
        if c.kind == "valu":
            if c.op.startswith("v_permlane") and vw & c.rd: n = max(n, 2)
            if ("dpp" in c.op or "row_" in c.mods or "quad_perm" in c.mods) and vw & c.rd: n = max(n, 2)
            if c.op in ("v_readfirstlane_b32", "v_readlane_b32") and vw & c.rd: n = max(n, 1)
            if p.op in TRANS and vw & c.rd: n = max(n, 1)
            if sw & c.rd: n = max(n, 4 if "lane" in c.op else 2)
            if ("op_sel" in p.mods or "sdwa" in p.op or "dst_sel" in p.mods) and vw & (c.rd | c.wr): n = max(n, 1)
        if c.kind == "vmem" and sw & c.rd: n = max(n, 5)
        if c.kind in ("salu", "smem") and sw & c.rd: n = max(n, 4)
        if p.op in TRANS and c.kind in ("vmem", "ds", "mfma") and vw & c.rd: n = max(n, 2)
    if p.kind == "salu":
        if ("s", "m0") in p.wr and c.kind in ("vmem", "ds") and ("s", "m0") in c.rd: n = max(n, 1)
    if p.kind == "mfma":
        big = p.passes == 8
        if c.kind == "mfma":
            if p.wr & c.srcAB: n = max(n, 12 if big else 8)
            if p.wr & c.srcC:
                if not (p.wr == c.srcC and p.passes == c.passes): n = max(n, 10 if big else 6)
            elif p.wr & c.wr: n = max(n, 12 if big else 8)
        elif c.kind in ("valu", "vmem", "ds"):
            if p.wr & (c.rd | c.wr): n = max(n, 12 if big else 8)
            if c.kind == "valu" and p.srcC & c.wr: n = max(n, 7 if big else 3)
            if c.kind != "valu" and p.srcC & c.wr: n = max(n, 7 if big else 3)
    if p.kind == "vmem" and p.stdata:
        if p.stdata & c.wr: n = max(n, 2)
    return n

class Asm:
    def __init__(self):
        self.items = []
        self._uid = 0
    def I(self, op, *args, mods=""):
        self.items.append(Ins(op, [str(a) for a in args], mods))
    def label(self, name): self.items.append(("label", name))
    def raw(self, text): self.items.append(("raw", text))
    def c(self, text): self.items.append(("raw", "    ; " + text))
    def uid(self, p="L"):
        self._uid += 1
        return f"{p}_{self._uid}"
    def __getattr__(self, op):
        if op.startswith(("v_", "s_", "ds_", "buffer_", "global_")):
            return lambda *a, mods="": self.I(op, *a, mods=mods)
        raise AttributeError(op)
    def wait(self, vm=None, lgkm=None):
        parts = []
        if vm is not None: parts.append(f"vmcnt({vm})")
        if lgkm is not None: parts.append(f"lgkmcnt({lgkm})")
        self.I("s_waitcnt", " ".join(parts))
    def render(self):
        out = []; hist = []
        for it in self.items:
            if isinstance(it, tuple):
                out.append(it[1] + ":" if it[0] == "label" else it[1])
                continue
            need = 0; dist = 0
            for p in reversed(hist):
                if dist >= 12: break
                n = need_states(p, it)
                if n - dist > need: need = n - dist
                dist += p.states
            while need > 0:
                k = min(need, 16)
                nop = Ins("s_nop", [str(k - 1)])
                out.append("    " + nop.text + "    ; auto"); hist.append(nop); need -= k
            out.append("    " + it.text); hist.append(it)
            if len(hist) > 16: hist = hist[-16:]
        return "\n".join(out) + "\n"
    def fence(self):
        self.I("s_nop", 11)
```

```python
from asmlib import *
NAME = "gated_mix__linear_kernel_hedgehog__dense_activation_gelu__prompt"
HEADER = open("cdna_kernels/" + NAME + ".s.ref").read().split("; Override launch")[0]

KA_X, KA_WQKV, KA_WPHI, KA_WO, KA_BX, KA_W1, KA_B1, KA_W2, KA_B2, KA_GW, KA_OUT, KA_DBG, KA_WS = [8 * i for i in range(13)]
SZ_X = 2048 * 448 * 2; SZ_WQKV = 448 * 1344 * 2; SZ_WPHI = 16 * 28 * 28 * 2; SZ_WO = 448 * 448 * 2
SZ_W1 = 448 * 1792 * 2; SZ_B1 = 1792 * 2; SZ_W2 = 1792 * 448 * 2; SZ_B2 = 448 * 2; SZ_GW = 448 * 2
SZ_OUT = SZ_X; SZ_WS = 256 << 20
MB = 1 << 20
WS_H = 0; WS_O = 8 * MB; WS_KVP = 12 * MB; WS_KVR = 15 * MB; WS_PQ = 16 * MB; WS_G = 20 * MB; WS_FLAG = 21 * MB
LOG2E = 0x3fb8aa3b
import struct
def f2u(x): return struct.unpack("<I", struct.pack("<f", x))[0]
def hx(x): return hex(x & 0xffffffff)

def srd(a, d, base, size):
    if d != base:
        a.s_mov_b32(s(d), s(base)); a.s_mov_b32(s(d + 1), s(base + 1))
    a.s_mov_b32(s(d + 2), hx(size)); a.s_mov_b32(s(d + 3), "0x20000")

def kernel_begin(a, name):
    a.raw(f".globl {name}\n.p2align 8\n.type {name},@function\n{name}:")

def descriptor(name, vgpr=256, sgpr=102):
    return f""".amdhsa_kernel {name}
  .amdhsa_next_free_vgpr {vgpr}
  .amdhsa_next_free_sgpr {sgpr}
  .amdhsa_accum_offset {(vgpr + 3) // 4 * 4}
  .amdhsa_group_segment_fixed_size 0
  .amdhsa_kernarg_size 104
  .amdhsa_user_sgpr_count 2
  .amdhsa_user_sgpr_kernarg_segment_ptr 1
  .amdhsa_system_sgpr_workgroup_id_x 1
  .amdhsa_float_denorm_mode_32 3
.end_amdhsa_kernel
"""
```

```python
import sys
from common import *

MF32 = "v_mfma_f32_32x32x16_bf16"
MF16 = "v_mfma_f32_16x16x32_bf16"

XF = 128
ACCA, ACCB = 96, 112
WB = [32, 64]
V_TID = 0; V_L = 1; V_VX0 = 2; V_VX1 = 3; V_VW = 4; V_AX = 5
V_AA = 9; V_AB = 10; V_T = 11
V_CAX = 240
V_CA = 244; V_CB = 245
S_R, S_C, S_ROT, S_W = 24, 25, 26, 27
S_KC, S_SX, S_SW, S_WX, S_WW, S_XB, S_CB = 28, 29, 30, 31, 32, 33, 34
S_T = 36
S_L = 48
SRD_X, SRD_W, SRD_WS, SRD_AUX, SRD_GW = 4, 8, 12, 16, 20

def next_kc(a):
    a.s_add_u32(s(S_KC), s(S_KC), 1)
    a.s_cmp_eq_u32(s(S_KC), 7)
    a.s_cselect_b32(s(S_KC), 0, s(S_KC))

def issue_stage(a, slot, attn):
    stride = 2688 if attn else 3584
    a.s_lshl_b32(s(S_SX), s(S_KC), 7)
    a.s_add_u32(s(S_SX), s(S_SX), s(S_XB))
    a.s_mul_i32(s(S_SW), s(S_KC), 64 * stride)
    a.s_add_u32(s(S_SW), s(S_SW), s(S_CB))
    for u in range(2):
        a.s_add_u32("m0", s(S_WX), hx(slot * 32768 + u * 1024))
        a.buffer_load_dwordx4(v(V_VX0 + u), s(SRD_X, 4), s(S_SX), mods="offen lds")
    if attn:
        a.s_mov_b32("exec_lo", "0xf7f77f7f"); a.s_mov_b32("exec_hi", "0xf7f77f7f")
    for u in range(2):
        a.s_add_u32("m0", s(S_WW), hx(slot * 32768 + 16384 + u * 8192))
        if u == 1: a.s_add_u32(s(S_SW), s(S_SW), 896 if attn else 128)
        a.buffer_load_dwordx4(v(V_VW), s(SRD_W, 4), s(S_SW), mods="offen lds")
    if attn: a.s_mov_b64("exec", -1)
    next_kc(a)

def issue_p2(a, chunks, attn, s_colbyte):
    stride = 2688 if attn else 3584
    if attn:
        a.s_mov_b32("exec_lo", "0xf7f77f7f"); a.s_mov_b32("exec_hi", "0xf7f77f7f")
    for ch in chunks:
        a.s_mul_i32(s(S_SW), s(S_KC), 64 * stride)
        a.s_add_u32(s(S_SW), s(S_SW), s(s_colbyte))
        a.s_add_u32("m0", s(S_WW), hx(65536 + ch * 8192))
        a.buffer_load_dwordx4(v(V_VW), s(SRD_W, 4), s(S_SW), mods="offen lds")
        next_kc(a)
    if attn: a.s_mov_b64("exec", -1)

def frag_reads(st):
    r = []
    wb = WB[st & 1]
    for t in range(4):
        r.append(("ds_read_b128", v(XF + st * 16 + t * 4, 4), v(V_CAX + t), 0))
        for tile, ad in ((0, V_CA), (1, V_CB)):
            for m in range(2):
                r.append(("ds_read_b64_tr_b16", v(wb + t * 8 + tile * 4 + m * 2, 2), v(ad), 16384 + t * 2048 + m * 512))
    return r

def set_slot_addrs(a, slot):
    for t in range(4):
        a.v_add_u32(v(V_CAX + t), hx(slot * 32768), v(V_AX + t))
    a.v_add_u32(v(V_CA), hx(slot * 32768), v(V_AA))
    a.v_add_u32(v(V_CB), hx(slot * 32768), v(V_AB))

def emit_reads(a, rs):
    for op, d, ad, off in rs:
        a.I(op, d, ad, mods=f"offset:{off}" if off else "")

def pass1(a, attn, nmisc, after_first_wait, hooks):
    a.wait(vm=nmisc + 16); a.s_barrier()
    set_slot_addrs(a, 0)
    emit_reads(a, frag_reads(0))
    vm = [12, 12, 12, 12, 11, 7 if attn else 11]
    for st in range(7):
        if st < 6:
            a.wait(vm=vm[st], lgkm=0); a.s_barrier()
        else:
            a.wait(lgkm=0)
        if st == 0: after_first_wait()
        if st < 2: issue_stage(a, st, attn)
        if st in hooks: hooks[st]()
        rs = []
        if st < 6:
            set_slot_addrs(a, (st + 1) % 5)
            rs = frag_reads(st + 1)
        wb = WB[st & 1]
        k = 0
        for t in range(4):
            for tile, acc in ((0, ACCA), (1, ACCB)):
                c = v(acc, 16)
                if attn and st == 0 and t == 0: c = "0"
                a.I(MF32, v(acc, 16), v(wb + t * 8 + tile * 4, 4), v(XF + st * 16 + t * 4, 4), c)
                n = 3 if (t * 2 + tile) % 2 == 0 else 2
                emit_reads(a, rs[k:k + n]); k += n
        emit_reads(a, rs[k:])

def pass2_tile(a, acc, addr, rowbytes, init0, fb=64, depth=8):
    def rd(i):
        b = fb + (i % depth) * 4
        for m in range(2):
            a.ds_read_b64_tr_b16(v(b + 2 * m, 2), v(addr), mods=f"offset:{(i * 16 + 4 * m) * rowbytes}")
    pre = depth - 1
    for i in range(pre): rd(i)
    for i in range(28):
        outstanding = min(27, i + pre - 1) - i
        a.wait(lgkm=min(15, 2 * outstanding))
        c = "0" if (init0 and i == 0) else v(acc, 16)
        a.I(MF32, v(acc, 16), v(fb + (i % depth) * 4, 4), v(XF + i * 4, 4), c)
        if i + pre < 28: rd(i + pre)

def gelu_tile(a, acc, tmp, s_c1, s_c2, s_off, v_st):
    for h in range(2):
        b = acc + 8 * h
        for i in range(8): a.v_mul_f32(v(tmp + i), v(b + i), v(b + i))
        for i in range(8): a.v_fma_f32(v(tmp + i), v(tmp + i), s(s_c2), v(v_c1reg))
        for i in range(8): a.v_mul_f32(v(tmp + i), v(tmp + i), v(b + i))
        for i in range(8): a.v_exp_f32(v(tmp + i), v(tmp + i))
        for i in range(8): a.v_add_f32(v(tmp + i), 1.0, v(tmp + i))
        for i in range(8): a.v_rcp_f32(v(tmp + i), v(tmp + i))
        for i in range(8): a.v_mul_f32(v(tmp + i), v(tmp + i), v(b + i))
        for i in range(4): a.v_cvt_pk_bf16_f32(v(b + i), v(tmp + 2 * i), v(tmp + 2 * i + 1))
        a.buffer_store_dwordx4(v(b, 4), v(v_st), s(SRD_WS, 4), s(s_off), mods="offen" + (" offset:1024" if h else ""))
v_c1reg = 246

def xhalf(a, op, x, t):
    a.v_mov_b32(v(t), v(x))
    a.v_permlane32_swap_b32(v(x), v(t))
    a.I(op, v(x), v(x), v(t))

def softmax_pm(a, P, E, T):
    mx, mn, t1, sp, sm = T, T + 1, T + 2, T + 3, T + 4
    a.v_max3_f32(v(mx), v(P), v(P + 1), v(P + 2)); a.v_min3_f32(v(mn), v(P), v(P + 1), v(P + 2))
    for i in range(3, 11, 2):
        a.v_max3_f32(v(mx), v(mx), v(P + i), v(P + i + 1)); a.v_min3_f32(v(mn), v(mn), v(P + i), v(P + i + 1))
    a.v_max_f32(v(mx), v(mx), v(P + 11)); a.v_min_f32(v(mn), v(mn), v(P + 11))
    for i in range(12, 16): a.v_mov_b32(v(E + i), 0)
    a.s_mov_b32("exec_hi", 0)
    for i in (12, 14):
        a.v_max3_f32(v(mx), v(mx), v(P + i), v(P + i + 1)); a.v_min3_f32(v(mn), v(mn), v(P + i), v(P + i + 1))
    a.s_mov_b32("exec_hi", -1)
    xhalf(a, "v_max_f32", mx, t1); xhalf(a, "v_min_f32", mn, t1)
    a.v_mul_f32(v(mx), s(S_L), v(mx)); a.v_mul_f32(v(mn), s(S_L), v(mn))
    def ex(rng):
        for i in rng: a.v_fma_f32(v(E + i), "-" + v(P + i), s(S_L), v(mn))
        for i in rng: a.v_fma_f32(v(P + i), v(P + i), s(S_L), "-" + v(mx))
        for i in rng: a.v_exp_f32(v(E + i), v(E + i))
        for i in rng: a.v_exp_f32(v(P + i), v(P + i))
    ex(range(12))
    a.s_mov_b32("exec_hi", 0)
    ex(range(12, 16))
    a.s_mov_b32("exec_hi", -1)
    a.v_add_f32(v(sp), v(P), v(P + 1)); a.v_add_f32(v(sm), v(E), v(E + 1))
    for i in range(2, 16):
        a.v_add_f32(v(sp), v(sp), v(P + i)); a.v_add_f32(v(sm), v(sm), v(E + i))
    xhalf(a, "v_add_f32", sp, t1); xhalf(a, "v_add_f32", sm, t1)
    a.v_rcp_f32(v(sp), v(sp)); a.v_rcp_f32(v(sm), v(sm))
    for i in range(16):
        a.v_mul_f32(v(P + i), v(P + i), v(sp)); a.v_mul_f32(v(E + i), v(E + i), v(sm))
    for i in range(8):
        a.v_cvt_pk_bf16_f32(v(P + i), v(P + 2 * i), v(P + 2 * i + 1))
        a.v_cvt_pk_bf16_f32(v(E + i), v(E + 2 * i), v(E + 2 * i + 1))

def pack16(a, acc):
    for i in range(8): a.v_cvt_pk_bf16_f32(v(acc + i), v(acc + 2 * i), v(acc + 2 * i + 1))

def common_lane_setup(a, stride):
    T = V_T
    a.v_lshrrev_b32(v(T), 3, v(V_L))
    a.s_lshl_b32(s(S_T), s(S_W), 4)
    a.v_add_u32(v(T + 1), s(S_T), v(T))
    a.v_mul_u32_u24(v(T + 1), 896, v(T + 1))
    a.v_and_b32(v(T + 2), 7, v(V_L))
    a.v_lshrrev_b32(v(T + 3), 4, v(V_L))
    a.v_xor_b32(v(T + 3), v(T + 2), v(T + 3))
    a.v_lshl_add_u32(v(V_VX0), v(T + 3), 4, v(T + 1))
    a.v_xor_b32(v(V_VX1), 64, v(V_VX0))
    a.v_add_u32(v(V_VX1), 8 * 896, v(V_VX1))
    a.s_lshl_b32(s(S_T), s(S_W), 3)
    a.v_add_u32(v(T + 1), s(S_T), v(T))
    a.v_mul_u32_u24(v(T + 1), stride, v(T + 1))
    a.v_lshrrev_b32(v(T + 3), 2, v(V_L))
    a.v_and_b32(v(T + 3), 4, v(T + 3))
    a.v_xor_b32(v(T + 3), v(T + 2), v(T + 3))
    a.v_lshl_add_u32(v(V_VW), v(T + 3), 4, v(T + 1))
    a.s_lshl_b32(s(S_WX), s(S_W), 11)
    a.s_lshl_b32(s(S_WW), s(S_W), 10)

def x_read_setup(a):
    T = V_T
    a.s_and_b32(s(S_T), s(S_W), 3); a.s_lshl_b32(s(S_T), s(S_T), 5)
    a.v_and_b32(v(T), 31, v(V_L))
    a.v_add_u32(v(T), s(S_T), v(T))
    a.v_bfe_u32(v(T + 1), v(T), 1, 3)
    a.v_lshrrev_b32(v(T + 2), 5, v(V_L))
    a.v_xor_b32(v(T + 1), v(T + 1), v(T + 2))
    a.v_lshlrev_b32(v(T + 1), 4, v(T + 1))
    a.v_lshl_add_u32(v(V_AX), v(T), 7, v(T + 1))
    for t in range(1, 4): a.v_xor_b32(v(V_AX + t), 32 * t, v(V_AX))

def tr_parts(a, d_row, d_col, d_sw):
    a.v_bfe_u32(v(d_row), v(V_L), 2, 2)
    a.v_lshrrev_b32(v(d_col), 5, v(V_L))
    a.v_lshl_add_u32(v(d_row), v(d_col), 3, v(d_row))
    a.v_and_b32(v(d_col), 3, v(V_L)); a.v_lshlrev_b32(v(d_col), 3, v(d_col))
    a.v_and_b32(v(d_sw), 16, v(V_L))
    a.v_lshl_add_u32(v(d_col), v(d_sw), 1, v(d_col))
    a.v_and_b32(v(d_sw), 8, v(V_L)); a.v_lshlrev_b32(v(d_sw), 3, v(d_sw))

def k1(a):
    kernel_begin(a, "p1_kernel")
    a.s_cmp_ge_u32(s(2), 256); a.s_cbranch_scc1("p1_end")
    a.s_load_dwordx4(s(4, 4), s(0, 2), KA_X)
    a.s_load_dwordx2(s(16, 2), s(0, 2), KA_WPHI)
    a.s_load_dwordx4(s(40, 4), s(0, 2), KA_W1)
    a.s_load_dwordx2(s(20, 2), s(0, 2), KA_GW)
    a.s_load_dwordx2(s(12, 2), s(0, 2), KA_WS)
    a.v_and_b32(v(V_L), 63, v(0))
    a.v_lshrrev_b32(v(V_T), 6, v(0))
    a.v_readfirstlane_b32(s(S_W), v(V_T))
    a.s_and_b32(s(36), s(2), 7); a.s_lshr_b32(s(37), s(2), 3)
    a.s_lshr_b32(s(38), s(36), 2); a.s_lshl_b32(s(38), s(38), 3); a.s_and_b32(s(39), s(37), 7)
    a.s_add_u32(s(S_R), s(38), s(39))
    a.s_lshr_b32(s(37), s(37), 3)
    a.s_and_b32(s(36), s(36), 3); a.s_lshl_b32(s(36), s(36), 1); a.s_and_b32(s(38), s(37), 1)
    a.s_add_u32(s(S_C), s(36), s(38))
    a.s_lshl_b32(s(38), s(37), 1); a.s_add_u32(s(S_ROT), s(S_R), s(38))
    a.s_mul_i32(s(38), s(S_ROT), 37); a.s_lshr_b32(s(38), s(38), 8); a.s_mul_i32(s(38), s(38), 7)
    a.s_sub_u32(s(S_ROT), s(S_ROT), s(38))
    a.s_mov_b32(s(S_KC), s(S_ROT))
    a.s_mul_i32(s(S_XB), s(S_R), 128 * 896)
    a.s_mov_b32(s(S_L), hx(LOG2E))
    a.s_cmp_lt_u32(s(37), 2)
    a.s_waitcnt("lgkmcnt(0)")
    a.s_cbranch_scc1("p1_attn")
    ffn(a)
    a.label("p1_attn")
    attn(a)
    a.label("p1_end")
    a.s_endpgm()

def ffn(a):
    T = V_T
    S_P2, S_SS, S_C2, S_HB, S_E0 = 49, 50, 51, 52, 53
    srd(a, SRD_W, 40, SZ_W1); srd(a, SRD_AUX, 42, SZ_B1); srd(a, SRD_X, 4, SZ_X); srd(a, SRD_WS, 12, SZ_WS)
    common_lane_setup(a, 3584)
    a.s_mul_i32(s(36), s(S_C), 448); a.s_and_b32(s(37), s(S_C), 1); a.s_lshl_b32(s(38), s(37), 6)
    a.s_add_u32(s(S_CB), s(36), s(38)); a.s_add_u32(s(S_P2), s(S_CB), 256)
    a.s_cmp_eq_u32(s(37), 0); a.s_cselect_b32(s(38), 384, 0); a.s_add_u32(s(S_SS), s(36), s(38))
    issue_stage(a, 0, False)
    a.s_lshr_b32(s(36), s(S_W), 2)
    a.s_lshl_b32(s(37), s(36), 7); a.s_add_u32(s(S_E0), s(S_CB), s(37))
    a.s_add_u32(s(S_E0 + 1), s(S_E0), 64)
    a.s_lshl_b32(s(37), s(36), 6); a.s_add_u32(s(S_E0 + 2), s(S_P2), s(37))
    a.s_mov_b32(s(S_E0 + 3), s(S_SS))
    a.v_lshrrev_b32(v(T), 5, v(V_L)); a.v_lshlrev_b32(v(T), 3, v(T))
    BI = 208
    for tile in range(4):
        for q in range(4):
            a.buffer_load_dwordx2(v(BI + tile * 8 + q * 2, 2), v(T), s(SRD_AUX, 4), s(S_E0 + tile), mods=f"offen offset:{q * 16}")
    for st in range(1, 5): issue_stage(a, st, False)
    x_read_setup(a)
    tr_parts(a, T, T + 1, T + 2)
    a.s_lshr_b32(s(36), s(S_W), 2)
    V_AS = 247; V_AC = 248; V_ST = 249; BS = 12
    a.v_lshl_add_u32(v(V_AS), v(T), 6, v(T + 1)); a.v_add_u32(v(V_AS), hx(131072), v(V_AS))
    a.v_xor_b32(v(T + 1), v(T + 1), v(T + 2))
    a.v_lshl_add_u32(v(T), v(T), 7, v(T + 1))
    a.s_lshl_b32(s(37), s(36), 13)
    a.v_add_u32(v(V_AA), s(37), v(T)); a.v_xor_b32(v(V_AB), 64, v(V_AA))
    a.s_lshl_b32(s(37), s(36), 6)
    a.v_xor_b32(v(V_AC), s(37), v(T)); a.v_add_u32(v(V_AC), hx(65536), v(V_AC))
    a.v_lshlrev_b32(v(V_ST), 4, v(V_L))
    a.v_mov_b32(v(v_c1reg), hx(f2u(-2.0 * 0.7978845608028654 * 1.4426950408889634)))
    a.s_mov_b32(s(S_C2), hx(f2u(-2.0 * 0.7978845608028654 * 0.044715 * 1.4426950408889634)))
    a.s_and_b32(s(37), s(S_W), 3); a.s_lshl_b32(s(38), s(S_R), 2); a.s_add_u32(s(37), s(37), s(38))
    a.s_mul_i32(s(S_HB), s(37), 114688)
    for tile in range(4):
        a.s_lshl_b32(s(S_E0 + tile), s(S_E0 + tile), 5); a.s_add_u32(s(S_E0 + tile), s(S_E0 + tile), s(S_HB))
    def unpack_bias(src, acc):
        for i in range(8):
            a.v_lshlrev_b32(v(acc + 2 * i), 16, v(src + i)); a.v_and_b32(v(acc + 2 * i + 1), "0xffff0000", v(src + i))
    def first():
        unpack_bias(BI, ACCA); unpack_bias(BI + 8, ACCB)
        for i in range(16): a.v_mov_b32(v(BS + i), v(BI + 16 + i))
    def issue_S():
        a.v_lshrrev_b32(v(28), 2, v(V_L)); a.v_mul_u32_u24(v(28), 3584, v(28))
        a.v_and_b32(v(29), 3, v(V_L)); a.v_lshl_add_u32(v(28), v(29), 4, v(28))
        for i in range(4):
            a.s_add_u32(s(36), s(S_W), 8 * i); a.s_min_u32(s(36), s(36), 27)
            a.s_lshr_b32(s(37), s(36), 2); a.s_add_u32(s(37), s(37), s(S_ROT))
            a.s_cmp_ge_u32(s(37), 7); a.s_cselect_b32(s(38), 7, 0); a.s_sub_u32(s(37), s(37), s(38))
            a.s_lshl_b32(s(37), s(37), 2); a.s_and_b32(s(38), s(36), 3); a.s_add_u32(s(37), s(37), s(38))
            a.s_mul_i32(s(37), s(37), 16 * 3584); a.s_add_u32(s(37), s(37), s(S_SS))
            a.s_lshl_b32(s(36), s(36), 10); a.s_add_u32("m0", s(36), hx(131072))
            a.buffer_load_dwordx4(v(28), s(SRD_W, 4), s(37), mods="offen lds")
    hooks = {2: lambda: issue_p2(a, range(0, 4), False, S_P2), 3: lambda: issue_p2(a, range(4, 7), False, S_P2), 4: issue_S}
    pass1(a, False, 16, first, hooks)
    ACCC, ACCD = 32, 48
    a.wait(vm=4); a.s_barrier()
    a.s_cmp_ge_u32(s(S_W), 4); a.s_cbranch_scc1("ffn_ch1")
    a.fence()
    unpack_bias(BS, ACCC); unpack_bias(BS + 8, ACCD)
    pass2_tile(a, ACCC, V_AC, 128, False)
    a.wait(vm=0); a.s_barrier()
    pass2_tile(a, ACCD, V_AS, 64, False)
    for tile, acc in ((0, ACCA), (1, ACCB), (2, ACCC), (3, ACCD)):
        gelu_tile(a, acc, 12, None, S_C2, S_E0 + tile, V_ST)
    a.s_endpgm()
    a.label("ffn_ch1")
    a.fence()
    unpack_bias(BS, ACCC)
    gelu_tile(a, ACCA, 12, None, S_C2, S_E0, V_ST)
    a.wait(vm=2); a.s_barrier()
    gelu_tile(a, ACCB, 12, None, S_C2, S_E0 + 1, V_ST)
    pass2_tile(a, ACCC, V_AC, 128, False)
    gelu_tile(a, ACCC, 12, None, S_C2, S_E0 + 2, V_ST)
    a.s_endpgm()

def attn(a):
    T = V_T
    S_Q, S_HH, S_O1, S_O2 = 49, 50, 51, 52
    srd(a, SRD_W, 6, SZ_WQKV); srd(a, SRD_X, 4, SZ_X); srd(a, SRD_AUX, 16, SZ_WPHI); srd(a, SRD_GW, 20, SZ_GW); srd(a, SRD_WS, 12, SZ_WS)
    common_lane_setup(a, 2688)
    a.s_mul_i32(s(S_Q), s(S_C), 112); a.s_add_u32(s(S_CB), s(S_Q), 896)
    issue_stage(a, 0, True)
    a.s_lshr_b32(s(S_HH), s(S_W), 2)
    WP = 16
    V_GW = 24
    a.v_and_b32(v(T), 31, v(V_L)); a.v_lshrrev_b32(v(T + 1), 5, v(V_L))
    a.v_mul_u32_u24(v(T + 2), 4 * 56, v(T + 1)); a.v_lshl_add_u32(v(T + 2), v(T), 1, v(T + 2))
    a.v_cmp_lt_u32("vcc", 27, v(T))
    a.v_mov_b32(v(T + 3), "0x7fffffff")
    a.v_cndmask_b32(v(T + 2), v(T + 2), v(T + 3), "vcc")
    a.v_cmp_lt_u32("vcc", 31, v(V_L))
    a.v_cndmask_b32(v(T + 3), v(T + 2), v(T + 3), "vcc")
    a.s_lshl_b32(s(36), s(S_C), 1); a.s_add_u32(s(36), s(36), s(S_HH)); a.s_mul_i32(s(36), s(36), 1568)
    for t in range(2):
        for j in range(8):
            d0 = 16 * t + 8 * (j // 4) + j % 4
            ad = T + 3 if d0 >= 24 else T + 2
            a.buffer_load_ushort(v(208 + t * 8 + j), v(ad), s(SRD_AUX, 4), s(36), mods=f"offen offset:{d0 * 56}")
    a.s_add_u32(s(36), s(S_W), s(S_ROT)); a.s_cmp_ge_u32(s(36), 7); a.s_cselect_b32(s(37), 7, 0); a.s_sub_u32(s(36), s(36), s(37))
    a.s_lshl_b32(s(36), s(36), 7)
    a.v_lshlrev_b32(v(T), 1, v(V_L))
    a.buffer_load_ushort(v(V_GW), v(T), s(SRD_GW, 4), s(36), mods="offen")
    for st in range(1, 5): issue_stage(a, st, True)
    x_read_setup(a)
    tr_parts(a, T, T + 1, T + 2)
    V_AQ = 247
    a.v_cmp_eq_u32("vcc", 56, v(T + 1))
    a.s_mul_i32(s(36), s(S_HH), 56)
    a.v_add_u32(v(T + 1), s(36), v(T + 1))
    a.v_add_u32(v(T + 3), -8, v(T + 1))
    a.v_mov_b32(v(T + 4), 112)
    a.v_cndmask_b32(v(T + 3), v(T + 1), v(T + 3), "vcc")
    a.v_cndmask_b32(v(T + 4), v(T + 1), v(T + 4), "vcc")
    a.v_xor_b32(v(T + 3), v(T + 3), v(T + 2)); a.v_xor_b32(v(T + 4), v(T + 4), v(T + 2))
    a.v_lshl_add_u32(v(V_AA), v(T), 7, v(T + 3)); a.v_add_u32(v(V_AB), hx(8192), v(V_AA))
    a.v_lshl_add_u32(v(V_AQ), v(T), 7, v(T + 4)); a.v_add_u32(v(V_AQ), hx(65536), v(V_AQ))
    def gate_write():
        a.v_mov_b32(v(V_GW + 1), 0)
        a.v_and_b32(v(26), 2, v(0)); a.v_lshlrev_b32(v(26), 5, v(26)); a.v_xor_b32(v(26), 112, v(26))
        a.v_lshl_add_u32(v(26), v(0), 7, v(26)); a.v_add_u32(v(26), hx(65536), v(26))
        a.s_cmp_eq_u32(s(S_W), 7); l = a.uid("gw"); a.s_cbranch_scc1(l)
        a.ds_write_b64(v(26), v(V_GW, 2))
        a.label(l)
    hooks = {2: lambda: issue_p2(a, range(0, 4), True, S_Q), 3: lambda: (issue_p2(a, range(4, 7), True, S_Q), gate_write())}
    def first():
        for i in range(8): a.v_lshl_or_b32(v(WP + i), v(208 + 2 * i + 1), 16, v(208 + 2 * i))
    pass1(a, True, 17, first, hooks)
    P, E, TT = 32, 48, 64
    pack16(a, ACCA)
    a.I(MF32, v(P, 16), v(WP, 4), v(ACCA, 4), "0")
    a.I(MF32, v(P, 16), v(WP + 4, 4), v(ACCA + 4, 4), v(P, 16))
    pack16(a, ACCB)
    a.s_mov_b32("exec_lo", 0)
    a.v_mov_b32(v(ACCB + 6), "0x3f80"); a.v_mov_b32(v(ACCB + 7), 0)
    a.s_mov_b32("exec_lo", -1)
    V_SW = 248; V_SR = 249
    a.s_cmp_eq_u32(s(S_HH), 0); a.s_cselect_b32(s(36), hx(131072), 0)
    a.s_and_b32(s(37), s(S_W), 3); a.s_mul_i32(s(38), s(37), 6400); a.s_add_u32(s(38), s(38), s(36))
    a.v_and_b32(v(T), 31, v(V_L)); a.v_mul_u32_u24(v(T), 200, v(T))
    a.v_lshrrev_b32(v(T + 1), 5, v(V_L)); a.v_lshl_add_u32(v(T), v(T + 1), 3, v(T)); a.v_add_u32(v(V_SW), s(38), v(T))
    for q in range(4): a.ds_write_b64(v(V_SW), v(ACCB + 2 * q, 2), mods=f"offset:{128 + 16 * q}")
    a.v_bfe_u32(v(T), v(V_L), 2, 3); a.v_lshlrev_b32(v(T), 1, v(T)); a.v_add_u32(v(T), v(T), v(T + 1))
    a.v_mul_u32_u24(v(T), 400, v(T))
    a.v_and_b32(v(T + 1), 3, v(V_L)); a.v_lshl_add_u32(v(T), v(T + 1), 3, v(T)); a.v_add_u32(v(V_SR), s(36), v(T))
    a.s_lshl_b32(s(37), s(37), 5)
    a.v_add_u32(v(V_SR + 1), s(37), v(V_SR))
    softmax_pm(a, P, E, TT)
    for q in range(4):
        a.ds_write_b64(v(V_SW), v(P + 2 * q, 2), mods=f"offset:{16 * q}")
        a.ds_write_b64(v(V_SW), v(E + 2 * q, 2), mods=f"offset:{64 + 16 * q}")
    a.wait(vm=0, lgkm=0); a.s_barrier()
    FA, FB, KV = 32, 48, 80
    for ks in range(4):
        for m in range(2):
            a.ds_read_b64_tr_b16(v(FA + ks * 4 + 2 * m, 2), v(V_SR + 1), mods=f"offset:{ks * 6400 + m * 200}")
        for dt in range(2):
            for m in range(2):
                a.ds_read_b64_tr_b16(v(FB + ks * 8 + dt * 4 + 2 * m, 2), v(V_SR), mods=f"offset:{ks * 6400 + m * 200 + 128 + 32 * dt}")
    a.v_lshrrev_b32(v(T), 5, v(V_L)); a.v_lshlrev_b32(v(T), 14, v(T))
    a.v_and_b32(v(T + 1), 16, v(V_L)); a.v_lshl_add_u32(v(T), v(T + 1), 5, v(T))
    a.v_and_b32(v(T + 1), 15, v(V_L)); a.v_lshl_add_u32(v(T), v(T + 1), 4, v(T))
    a.s_lshl_b32(s(36), s(S_C), 4); a.s_lshl_b32(s(37), s(S_W), 1); a.s_add_u32(s(36), s(36), s(37))
    a.s_lshl_b32(s(36), s(36), 4); a.s_add_u32(s(36), s(36), s(S_R)); a.s_lshl_b32(s(36), s(36), 10)
    a.s_add_u32(s(36), s(36), hx(WS_KVP))
    for ks in range(4):
        a.wait(lgkm=min(15, 6 * (3 - ks)))
        for dt in range(2):
            a.I(MF16, v(KV + dt * 4, 4), v(FA + ks * 4, 4), v(FB + ks * 8 + dt * 4, 4), "0" if ks == 0 else v(KV + dt * 4, 4))
    for dt in range(2):
        a.buffer_store_dwordx4(v(KV + dt * 4, 4), v(T), s(SRD_WS, 4), s(36), mods=f"offen offset:{dt * 256}")
    pass2_tile(a, ACCA, V_AQ, 128, True, fb=32)
    G = 25
    a.v_mov_b32(v(G), v(ACCA + 12)); a.v_mov_b32(v(G + 1), v(ACCA + 12))
    a.v_permlane32_swap_b32(v(G + 1), v(G))
    pack16(a, ACCA)
    a.I(MF32, v(P, 16), v(WP, 4), v(ACCA, 4), "0")
    a.I(MF32, v(P, 16), v(WP + 4, 4), v(ACCA + 4, 4), v(P, 16))
    a.v_mul_f32(v(G), s(S_L), v(G)); a.v_exp_f32(v(G), "-" + v(G)); a.v_add_f32(v(G), 1.0, v(G)); a.v_rcp_f32(v(G), v(G))
    softmax_pm(a, P, E, TT)
    a.s_lshl_b32(s(36), s(S_R), 3); a.s_add_u32(s(36), s(36), s(S_C))
    a.s_lshl_b32(s(37), s(36), 3); a.s_add_u32(s(37), s(37), s(S_W)); a.s_lshl_b32(s(37), s(37), 12); a.s_add_u32(s(37), s(37), hx(WS_PQ))
    a.v_lshlrev_b32(v(T), 4, v(V_L))
    for t in range(4):
        src = P + 4 * t if t < 2 else E + 4 * (t - 2)
        a.buffer_store_dwordx4(v(src, 4), v(T), s(SRD_WS, 4), s(37), mods=f"offen offset:{t * 1024}")
    a.s_lshl_b32(s(36), s(36), 9); a.s_and_b32(s(37), s(S_W), 3); a.s_lshl_b32(s(37), s(37), 7); a.s_add_u32(s(36), s(36), s(37)); a.s_add_u32(s(36), s(36), hx(WS_G))
    a.v_and_b32(v(T + 1), 31, v(V_L)); a.v_lshlrev_b32(v(T + 1), 2, v(T + 1))
    a.buffer_store_dword(v(G), v(T + 1), s(SRD_WS, 4), s(36), mods="offen")

def k2a(a):
    kernel_begin(a, "red_kernel")
    a.s_cmp_ge_u32(s(2), 128); a.s_cbranch_scc1("red_end")
    a.s_load_dwordx2(s(12, 2), s(0, 2), KA_WS)
    a.v_lshlrev_b32(v(1), 4, v(0))
    a.s_lshl_b32(s(4), s(2), 14); a.s_add_u32(s(4), s(4), hx(WS_KVP))
    a.s_waitcnt("lgkmcnt(0)")
    srd(a, 12, 12, SZ_WS)
    for r in range(16):
        if r % 4 == 0 and r: a.s_add_u32(s(4), s(4), 4096)
        a.buffer_load_dwordx4(v(8 + 4 * r, 4), v(1), s(12, 4), s(4), mods=f"offen offset:{(r % 4) * 1024}")
    a.wait(vm=0)
    for r in range(1, 16):
        for i in range(4): a.v_add_f32(v(8 + i), v(8 + i), v(8 + 4 * r + i))
    a.v_cvt_pk_bf16_f32(v(8), v(8), v(9)); a.v_cvt_pk_bf16_f32(v(9), v(10), v(11))
    a.v_lshlrev_b32(v(1), 3, v(0))
    a.s_lshl_b32(s(4), s(2), 9); a.s_add_u32(s(4), s(4), hx(WS_KVR))
    a.buffer_store_dwordx2(v(8, 2), v(1), s(12, 4), s(4), mods="offen")
    a.label("red_end"); a.s_endpgm()

def k2b(a):
    kernel_begin(a, "o_kernel")
    a.s_cmp_ge_u32(s(2), 128); a.s_cbranch_scc1("o_end")
    a.s_load_dwordx2(s(12, 2), s(0, 2), KA_WS)
    a.v_and_b32(v(1), 63, v(0)); a.v_lshrrev_b32(v(2), 6, v(0)); a.v_readfirstlane_b32(s(S_W), v(2))
    a.s_lshr_b32(s(S_R), s(2), 3); a.s_and_b32(s(S_C), s(2), 7)
    a.s_waitcnt("lgkmcnt(0)")
    srd(a, 12, 12, SZ_WS)
    PQ, KV, D, G = 16, 32, 48, 8
    a.s_lshl_b32(s(37), s(2), 3); a.s_add_u32(s(37), s(37), s(S_W)); a.s_lshl_b32(s(37), s(37), 12); a.s_add_u32(s(37), s(37), hx(WS_PQ))
    a.v_lshlrev_b32(v(3), 4, v(1))
    for t in range(4): a.buffer_load_dwordx4(v(PQ + 4 * t, 4), v(3), s(12, 4), s(37), mods=f"offen offset:{t * 1024}")
    a.s_lshr_b32(s(36), s(S_W), 2); a.s_lshl_b32(s(37), s(S_C), 1); a.s_add_u32(s(36), s(36), s(37)); a.s_lshl_b32(s(36), s(36), 12); a.s_add_u32(s(36), s(36), hx(WS_KVR))
    a.v_lshlrev_b32(v(4), 3, v(1))
    for i in range(8): a.buffer_load_dwordx2(v(KV + 2 * i, 2), v(4), s(12, 4), s(36), mods=f"offen offset:{i * 512}")
    a.s_lshl_b32(s(36), s(2), 9); a.s_and_b32(s(37), s(S_W), 3); a.s_lshl_b32(s(37), s(37), 7); a.s_add_u32(s(36), s(36), s(37)); a.s_add_u32(s(36), s(36), hx(WS_G))
    a.v_and_b32(v(5), 31, v(1)); a.v_lshlrev_b32(v(5), 2, v(5))
    a.buffer_load_dword(v(G), v(5), s(12, 4), s(36), mods="offen")
    a.wait(vm=0)
    for t in range(4): a.I(MF32, v(D, 16), v(KV + 4 * t, 4), v(PQ + 4 * t, 4), "0" if t == 0 else v(D, 16))
    a.v_mov_b32(v(9), v(D + 12)); a.v_mov_b32(v(10), v(D + 12))
    a.v_permlane32_swap_b32(v(10), v(9))
    a.v_add_f32(v(9), hx(f2u(1e-6)), v(9)); a.v_rcp_f32(v(9), v(9)); a.v_mul_f32(v(9), v(9), v(G))
    for i in range(16): a.v_mul_f32(v(D + i), v(D + i), v(9))
    pack16(a, D)
    a.s_mov_b32("exec_lo", 0); a.v_mov_b32(v(D + 6), 0); a.v_mov_b32(v(D + 7), 0); a.s_mov_b32("exec_lo", -1)
    a.s_and_b32(s(36), s(S_W), 3); a.s_lshl_b32(s(37), s(S_R), 2); a.s_add_u32(s(36), s(36), s(37))
    a.s_lshl_b32(s(36), s(36), 3); a.s_add_u32(s(36), s(36), s(S_C)); a.s_lshl_b32(s(36), s(36), 1)
    a.s_lshr_b32(s(37), s(S_W), 2); a.s_add_u32(s(36), s(36), s(37)); a.s_lshl_b32(s(36), s(36), 11); a.s_add_u32(s(36), s(36), hx(WS_O))
    for t in range(2): a.buffer_store_dwordx4(v(D + 4 * t, 4), v(3), s(12, 4), s(36), mods=f"offen offset:{t * 1024}")
    a.label("o_end"); a.s_endpgm()

def k3(a):
    kernel_begin(a, "p2_kernel")
    a.s_cmp_ge_u32(s(2), 224); a.s_cbranch_scc1("p2_end")
    a.s_load_dwordx2(s(4, 2), s(0, 2), KA_WO)
    a.s_load_dwordx4(s(40, 4), s(0, 2), KA_W2)
    a.s_load_dwordx2(s(20, 2), s(0, 2), KA_OUT)
    a.s_load_dwordx2(s(12, 2), s(0, 2), KA_WS)
    a.v_and_b32(v(V_L), 63, v(0)); a.v_lshrrev_b32(v(2), 6, v(0)); a.v_readfirstlane_b32(s(S_W), v(2))
    S_TT, S_CT, S_LB = 24, 25, 26
    a.s_and_b32(s(36), s(2), 7); a.s_lshr_b32(s(37), s(2), 3)
    a.s_lshl_b32(s(36), s(36), 2); a.s_and_b32(s(38), s(37), 3); a.s_add_u32(s(S_TT), s(36), s(38)); a.s_lshr_b32(s(S_CT), s(37), 2)
    a.s_mul_i32(s(S_LB), s(S_W), 20480)
    a.s_waitcnt("lgkmcnt(0)")
    SRD_WO, SRD_W2, SRD_B2, SRD_OUT = 4, 8, 16, 20
    srd(a, SRD_W2, 40, SZ_W2); srd(a, SRD_B2, 42, SZ_B2); srd(a, SRD_WO, 4, SZ_WO); srd(a, SRD_OUT, 20, SZ_OUT); srd(a, SRD_WS, 12, SZ_WS)
    WR = 112
    ACC = 48
    FR = 8
    NB = 10
    V_D, V_A0, V_A1, V_16, V_G = 2, 3, 4, 5, 6
    a.v_lshrrev_b32(v(8), 3, v(V_L)); a.v_mul_u32_u24(v(8), 896, v(8))
    a.v_and_b32(v(9), 7, v(V_L)); a.v_lshrrev_b32(v(10), 2, v(V_L)); a.v_and_b32(v(10), 4, v(10)); a.v_xor_b32(v(9), v(9), v(10))
    a.v_lshl_add_u32(v(V_D), v(9), 4, v(8))
    a.s_mul_i32(s(36), s(S_W), 224 * 896); a.s_lshl_b32(s(37), s(S_CT), 7); a.s_add_u32(s(36), s(36), s(37))
    a.s_mul_i32(s(38), s(S_W), 56 * 896); a.s_add_u32(s(38), s(38), s(37))
    def dma(srdn, sreg, ldsrow8):
        a.s_add_u32("m0", s(S_LB), ldsrow8 * 1024)
        a.buffer_load_dwordx4(v(V_D), s(srdn, 4), s(sreg), mods="offen lds")
        a.s_add_u32(s(sreg), s(sreg), 8 * 896)
    for i in range(18): dma(SRD_W2, 36, i)
    a.v_bfe_u32(v(8), v(V_L), 2, 2); a.v_lshrrev_b32(v(9), 5, v(V_L)); a.v_lshl_add_u32(v(8), v(9), 2, v(8))
    a.v_and_b32(v(9), 3, v(V_L)); a.v_lshlrev_b32(v(9), 3, v(9)); a.v_and_b32(v(10), 16, v(V_L)); a.v_lshl_add_u32(v(9), v(10), 1, v(9))
    a.v_and_b32(v(10), 8, v(V_L)); a.v_lshlrev_b32(v(10), 3, v(10)); a.v_xor_b32(v(9), v(9), v(10))
    a.v_lshl_add_u32(v(V_A0), v(8), 7, v(9)); a.v_add_u32(v(V_A0), s(S_LB), v(V_A0)); a.v_xor_b32(v(V_A1), 64, v(V_A0))
    a.v_lshlrev_b32(v(V_16), 4, v(V_L))
    def trread(ks, row0):
        for ft in range(2):
            for m in range(2):
                a.ds_read_b64_tr_b16(v(WR + ks * 8 + ft * 4 + 2 * m, 2), v(V_A0 + ft), mods=f"offset:{(row0 + 8 * m) * 128}")
    a.wait(vm=0)
    for ks in range(9): trread(ks, 16 * ks)
    a.wait(lgkm=0)
    for i in range(10): dma(SRD_W2, 36, i)
    for i in range(8): dma(SRD_WO, 38, 10 + i)
    a.s_lshr_b32(s(36), s(S_TT), 1); a.s_lshl_b32(s(36), s(36), 3); a.s_add_u32(s(36), s(36), s(S_W)); a.s_lshl_b32(s(36), s(36), 9)
    a.s_and_b32(s(37), s(S_TT), 1); a.s_lshl_b32(s(37), s(37), 8); a.s_add_u32(s(36), s(36), s(37)); a.s_add_u32(s(39), s(36), hx(WS_G))
    a.v_and_b32(v(8), 31, v(V_L)); a.v_lshlrev_b32(v(8), 2, v(8))
    for tt in range(2): a.buffer_load_dword(v(V_G + tt), v(8), s(SRD_WS, 4), s(39), mods=f"offen offset:{tt * 128}")
    a.wait(vm=0)
    for ks in range(9, 14): trread(ks, 16 * (ks - 9))
    for hh in range(2):
        for t in range(2): trread(14 + 2 * hh + t, 80 + 28 * hh + 16 * t)
    S_H0, S_H1, S_O0, S_O1 = 40, 41, 42, 43
    a.s_lshl_b32(s(36), s(S_TT), 1); a.s_mul_i32(s(S_H0), s(36), 114688); a.s_mul_i32(s(37), s(S_W), 14336); a.s_add_u32(s(S_H0), s(S_H0), s(37))
    a.s_add_u32(s(S_H1), s(S_H0), 114688)
    a.s_lshl_b32(s(36), s(36), 3); a.s_add_u32(s(36), s(36), s(S_W)); a.s_lshl_b32(s(36), s(36), 12); a.s_add_u32(s(S_O0), s(36), hx(WS_O))
    a.s_add_u32(s(S_O1), s(S_O0), 32768)
    def aload(n):
        ks, tt = n >> 1, n & 1
        if ks < 14:
            sr = S_H0 + tt
            if ks % 4 == 0 and ks: a.s_add_u32(s(sr), s(sr), 4096)
            off = (ks % 4) * 1024
        else:
            sr = S_O0 + tt; off = (ks - 14) * 1024
        a.buffer_load_dwordx4(v(FR + (n % NB) * 4, 4), v(V_16), s(SRD_WS, 4), s(sr), mods=f"offen offset:{off}")
    for n in range(NB - 1): aload(n)
    for tt in range(2): a.v_sub_f32(v(V_G + tt), 1.0, v(V_G + tt))
    a.wait(lgkm=0)
    for n in range(36):
        ks, tt = n >> 1, n & 1
        if n == 28:
            for ft in range(2):
                for t2 in range(2):
                    for i in range(16): a.v_mul_f32(v(ACC + ft * 32 + t2 * 16 + i), v(ACC + ft * 32 + t2 * 16 + i), v(V_G + t2))
        a.wait(vm=min(35, n + NB - 2) - n)
        for ft in range(2):
            acc = ACC + ft * 32 + tt * 16
            a.I(MF32, v(acc, 16), v(WR + ks * 8 + ft * 4, 4), v(FR + (n % NB) * 4, 4), "0" if ks == 0 else v(acc, 16))
        if n + NB - 1 < 36: aload(n + NB - 1)
    a.v_lshrrev_b32(v(8), 3, v(0)); a.v_and_b32(v(9), 7, v(0))
    a.v_lshlrev_b32(v(10), 2, v(8)); a.v_lshlrev_b32(v(11), 4, v(9))
    a.s_lshl_b32(s(37), s(S_CT), 7)
    a.buffer_load_dword(v(12), v(10), s(SRD_WS, 4), s(39), mods="offen")
    a.buffer_load_dwordx4(v(16, 4), v(11), s(SRD_B2, 4), s(37), mods="offen")
    a.v_and_b32(v(13), 31, v(V_L)); a.v_mul_u32_u24(v(13), 272, v(13)); a.v_lshrrev_b32(v(14), 5, v(V_L)); a.v_lshl_add_u32(v(13), v(14), 7, v(13))
    a.v_add_u32(v(13), s(S_LB), v(13))
    for tt in range(2):
        for ft in range(2):
            for q in range(4):
                a.ds_write_b128(v(13), v(ACC + ft * 32 + tt * 16 + 4 * q, 4), mods=f"offset:{tt * 32 * 272 + (4 * ft + q) * 16}")
    a.v_mul_u32_u24(v(13), 272, v(8)); a.v_add_u32(v(13), v(13), v(11))
    a.v_add_u32(v(14), 3 * 20480, v(13)); a.v_add_u32(v(15), 6 * 20480, v(13))
    a.wait(lgkm=0); a.s_barrier()
    RB = 112
    for w in range(8):
        for h in range(2):
            a.ds_read_b128(v(RB + w * 8 + 4 * h, 4), v(13 + w // 3), mods=f"offset:{(w % 3) * 20480 + 128 * h}")
    a.wait(vm=0)
    a.v_sub_f32(v(12), 1.0, v(12))
    for i in range(4):
        a.v_lshlrev_b32(v(24 + 2 * i), 16, v(16 + i)); a.v_and_b32(v(25 + 2 * i), "0xffff0000", v(16 + i))
    for i in range(8): a.v_mul_f32(v(24 + i), v(24 + i), v(12))
    for w in range(8):
        a.wait(lgkm=14 - 2 * w)
        for i in range(8): a.v_add_f32(v(24 + i), v(24 + i), v(RB + w * 8 + i))
    for i in range(4): a.v_cvt_pk_bf16_f32(v(24 + i), v(24 + 2 * i), v(25 + 2 * i))
    a.v_mul_u32_u24(v(8), 896, v(8)); a.v_add_u32(v(8), v(8), v(11))
    a.s_mul_i32(s(36), s(S_TT), 64 * 896); a.s_add_u32(s(36), s(36), s(37))
    a.buffer_store_dwordx4(v(24, 4), v(8), s(SRD_OUT, 4), s(36), mods="offen")
    a.label("p2_end"); a.s_endpgm()

def main(path):
    a = Asm()
    k1(a); k2a(a); k2b(a); k3(a)
    txt = HEADER
    txt += "; @launch kernel=p1_kernel grid=(256,1,1) block=(512,1,1) lds=163840\n"
    txt += "; @launch kernel=red_kernel grid=(128,1,1) block=(64,1,1) lds=0\n"
    txt += "; @launch kernel=o_kernel grid=(128,1,1) block=(512,1,1) lds=0\n"
    txt += "; @launch kernel=p2_kernel grid=(224,1,1) block=(512,1,1) lds=163840\n"
    txt += '.amdgcn_target "amdgcn-amd-amdhsa--gfx950"\n.text\n'
    txt += a.render()
    txt += '.section .rodata,"a"\n'
    for n in ("p1_kernel", "red_kernel", "o_kernel", "p2_kernel"):
        txt += ".p2align 6\n" + descriptor(n)
    open(path, "w").write(txt)

if __name__ == "__main__":
    main(sys.argv[1])
```

```python
import re

def v(a, n=1):
    return f"v{a}" if n == 1 else f"v[{a}:{a+n-1}]"
def s(a, n=1):
    return f"s{a}" if n == 1 else f"s[{a}:{a+n-1}]"

_reg_re = re.compile(r"^(-|abs\()?([vsa])(?:(\d+)|\[(\d+):(\d+)\])\)?$")

def regs_of(op):
    op = op.strip()
    if op == "vcc": return {("s", "vcc")}
    if op == "exec": return {("s", "exec")}
    if op == "m0": return {("s", "m0")}
    m = _reg_re.match(op)
    if not m: return set()
    k = m.group(2)
    if m.group(3) is not None:
        return {(k, int(m.group(3)))}
    return {(k, i) for i in range(int(m.group(4)), int(m.group(5)) + 1)}

TRANS = ("v_exp_f32", "v_log_f32", "v_rcp_f32", "v_rsq_f32", "v_sqrt_f32", "v_sin_f32", "v_cos_f32")

class Ins:
    __slots__ = ("op", "args", "mods", "text", "kind", "wr", "rd", "passes", "srcC", "srcAB", "states", "stdata")
    def __init__(self, op, args, mods=""):
        self.op, self.args, self.mods = op, list(args), mods
        self.text = op + (" " + ", ".join(self.args) if self.args else "") + (" " + mods if mods else "")
        self.passes = 0; self.srcC = set(); self.srcAB = set(); self.states = 1; self.stdata = set()
        a = self.args
        R = lambda xs: set().union(*[regs_of(x) for x in xs]) if xs else set()
        if op.startswith("v_mfma"):
            self.kind = "mfma"
            self.passes = 8 if "32x32x16" in op else 4
            self.wr = R(a[:1]); self.srcAB = R(a[1:3]); self.srcC = R(a[3:4]); self.rd = self.srcAB | self.srcC
        elif op.startswith("v_cmp"):
            self.kind = "valu"; self.wr = R(a[:1]); self.rd = R(a[1:])
        elif op in ("v_readfirstlane_b32", "v_readlane_b32"):
            self.kind = "valu"; self.wr = R(a[:1]); self.rd = R(a[1:])
        elif op.startswith("v_permlane") and "swap" in op:
            self.kind = "valu"; self.wr = R(a[:2]); self.rd = R(a[:2])
        elif op.startswith("v_"):
            self.kind = "valu"; self.wr = R(a[:1]); self.rd = R(a[1:])
            if op.startswith("v_fmac") or op.startswith("v_dot2c") or "writelane" in op: self.rd |= self.wr
            if op.startswith("v_add_co") or op.startswith("v_addc_co") or op.startswith("v_sub_co"):
                self.wr = R(a[:2]); self.rd = R(a[2:])
        elif op.startswith("ds_read") or op.startswith("ds_bpermute") or op.startswith("ds_swizzle"):
            self.kind = "ds"; self.wr = R(a[:1]); self.rd = R(a[1:])
        elif op.startswith("ds_"):
            self.kind = "ds"; self.wr = set(); self.rd = R(a)
        elif op.startswith("buffer_load") or op.startswith("global_load"):
            self.kind = "vmem"
            if " lds" in (" " + mods) or "_lds_" in op:
                self.wr = set(); self.rd = R(a) | {("s", "m0")}
            else:
                self.wr = R(a[:1]); self.rd = R(a[1:])
                if "d16" in op: self.rd |= self.wr
        elif op.startswith("buffer_store") or op.startswith("buffer_atomic"):
            self.kind = "vmem"; self.wr = set(); self.rd = R(a)
            if "sc0" in mods and "atomic" in op: self.wr = R(a[:1])
            if op.endswith("x4") or op.endswith("x3"): self.stdata = R(a[:1])
        elif op.startswith("global_store") or op.startswith("global_atomic"):
            self.kind = "vmem"; self.wr = set(); self.rd = R(a)
            if op.endswith("x4") or op.endswith("x3"): self.stdata = R(a[1:2])
        elif op.startswith("buffer_"):
            self.kind = "vmem"; self.wr = set(); self.rd = set()
        elif op == "s_nop":
            self.kind = "salu"; self.wr = set(); self.rd = set(); self.states = int(a[0]) + 1
        elif op.startswith("s_load") or op.startswith("s_mem"):
            self.kind = "smem"; self.wr = R(a[:1]); self.rd = R(a[1:])
        elif op.startswith("s_cmp") or op.startswith("s_cbranch") or op in ("s_branch", "s_barrier", "s_waitcnt", "s_endpgm", "s_sleep", "s_setprio"):
            self.kind = "salu"; self.wr = set(); self.rd = R(a)
        elif op.startswith("s_"):
            self.kind = "salu"; self.wr = R(a[:1]); self.rd = R(a[1:])
            if "saveexec" in op: self.wr |= {("s", "exec")}
        else:
            raise ValueError("unknown op " + op)

def need_states(p, c):
    n = 0
    vw = {r for r in p.wr if r[0] in "va"}
    sw = {r for r in p.wr if r[0] == "s"}
    if p.kind == "valu":
        if c.kind == "mfma" and vw & c.rd: n = max(n, 2)
        if c.kind == "valu":
            if c.op.startswith("v_permlane") and vw & c.rd: n = max(n, 2)
            if ("dpp" in c.op or "row_" in c.mods or "quad_perm" in c.mods) and vw & c.rd: n = max(n, 2)
            if c.op in ("v_readfirstlane_b32", "v_readlane_b32") and vw & c.rd: n = max(n, 1)
            if p.op in TRANS and vw & c.rd: n = max(n, 1)
            if sw & c.rd: n = max(n, 4 if "lane" in c.op else 2)
            if ("op_sel" in p.mods or "sdwa" in p.op or "dst_sel" in p.mods) and vw & (c.rd | c.wr): n = max(n, 1)
        if c.kind == "vmem" and sw & c.rd: n = max(n, 5)
        if c.kind in ("salu", "smem") and sw & c.rd: n = max(n, 4)
        if p.op in TRANS and c.kind in ("vmem", "ds", "mfma") and vw & c.rd: n = max(n, 2)
    if p.kind == "salu":
        if ("s", "m0") in p.wr and c.kind in ("vmem", "ds") and ("s", "m0") in c.rd: n = max(n, 1)
    if p.kind == "mfma":
        big = p.passes == 8
        if c.kind == "mfma":
            if p.wr & c.srcAB: n = max(n, 12 if big else 8)
            if p.wr & c.srcC:
                if not (p.wr == c.srcC and p.passes == c.passes): n = max(n, 10 if big else 6)
            elif p.wr & c.wr: n = max(n, 12 if big else 8)
        elif c.kind in ("valu", "vmem", "ds"):
            if p.wr & (c.rd | c.wr): n = max(n, 12 if big else 8)
            if c.kind == "valu" and p.srcC & c.wr: n = max(n, 7 if big else 3)
            if c.kind != "valu" and p.srcC & c.wr: n = max(n, 7 if big else 3)
    if p.kind == "vmem" and p.stdata:
        if p.stdata & c.wr: n = max(n, 2)
    return n

class Asm:
    def __init__(self):
        self.items = []
        self._uid = 0
        self.vmn = 0
    def I(self, op, *args, mods=""):
        ins = Ins(op, [str(a) for a in args], mods)
        if ins.kind == "vmem": self.vmn += 1
        self.items.append(ins)
    def mark(self): return self.vmn
    def wait_vm(self, mark, lgkm=None):
        n = self.vmn - mark
        assert n >= 0
        self.wait(vm=min(n, 63), lgkm=lgkm)
    def label(self, name): self.items.append(("label", name))
    def raw(self, text): self.items.append(("raw", text))
    def c(self, text): self.items.append(("raw", "    ; " + text))
    def uid(self, p="L"):
        self._uid += 1
        return f"{p}_{self._uid}"
    def __getattr__(self, op):
        if op.startswith(("v_", "s_", "ds_", "buffer_", "global_")):
            return lambda *a, mods="": self.I(op, *a, mods=mods)
        raise AttributeError(op)
    def wait(self, vm=None, lgkm=None):
        parts = []
        if vm is not None: parts.append(f"vmcnt({vm})")
        if lgkm is not None: parts.append(f"lgkmcnt({lgkm})")
        self.I("s_waitcnt", " ".join(parts))
    def render(self):
        out = []; hist = []
        for it in self.items:
            if isinstance(it, tuple):
                out.append(it[1] + ":" if it[0] == "label" else it[1])
                continue
            need = 0; dist = 0
            for p in reversed(hist):
                if dist >= 12: break
                n = need_states(p, it)
                if n - dist > need: need = n - dist
                dist += p.states
            while need > 0:
                k = min(need, 16)
                nop = Ins("s_nop", [str(k - 1)])
                out.append("    " + nop.text + "    ; auto"); hist.append(nop); need -= k
            out.append("    " + it.text); hist.append(it)
            if len(hist) > 16: hist = hist[-16:]
        return "\n".join(out) + "\n"
    def fence(self):
        self.I("s_nop", 11)
```

```python
from asmlib import *
NAME = "gated_mix__linear_kernel_hedgehog__dense_activation_gelu__prompt"
HEADER = open("cdna_kernels/" + NAME + ".s.ref").read().split("; Override launch")[0]

KA_X, KA_WQKV, KA_WPHI, KA_WO, KA_BX, KA_W1, KA_B1, KA_W2, KA_B2, KA_GW, KA_OUT, KA_DBG, KA_WS = [8 * i for i in range(13)]
SZ_X = 2048 * 448 * 2; SZ_WQKV = 448 * 1344 * 2; SZ_WPHI = 16 * 28 * 28 * 2; SZ_WO = 448 * 448 * 2
SZ_W1 = 448 * 1792 * 2; SZ_B1 = 1792 * 2; SZ_W2 = 1792 * 448 * 2; SZ_B2 = 448 * 2; SZ_GW = 448 * 2
SZ_OUT = SZ_X; SZ_WS = 256 << 20
MB = 1 << 20
WS_H = 0; WS_O = 8 * MB; WS_KVP = 12 * MB; WS_KVR = 15 * MB; WS_PQ = 16 * MB; WS_G = 20 * MB; WS_FLAG = 21 * MB
LOG2E = 0x3fb8aa3b
import struct
def f2u(x): return struct.unpack("<I", struct.pack("<f", x))[0]
def hx(x): return hex(x & 0xffffffff)

def srd(a, d, base, size):
    if d != base:
        a.s_mov_b32(s(d), s(base)); a.s_mov_b32(s(d + 1), s(base + 1))
    a.s_mov_b32(s(d + 2), hx(size)); a.s_mov_b32(s(d + 3), "0x20000")

def kernel_begin(a, name):
    a.raw(f".globl {name}\n.p2align 8\n.type {name},@function\n{name}:")

def descriptor(name, vgpr=256, sgpr=102):
    return f""".amdhsa_kernel {name}
  .amdhsa_next_free_vgpr {vgpr}
  .amdhsa_next_free_sgpr {sgpr}
  .amdhsa_accum_offset {(vgpr + 3) // 4 * 4}
  .amdhsa_group_segment_fixed_size 0
  .amdhsa_kernarg_size 104
  .amdhsa_user_sgpr_count 2
  .amdhsa_user_sgpr_kernarg_segment_ptr 1
  .amdhsa_system_sgpr_workgroup_id_x 1
  .amdhsa_float_denorm_mode_32 3
.end_amdhsa_kernel
"""

WS_STAMP = 24 * MB
class Stamper:
    def __init__(self, a, on): self.a, self.on, self.n = a, on, 0
    def reset(self, n=0): self.n = n
    def __call__(self):
        if not self.on: return
        assert self.n < 15
        self.a.s_memtime(s(68 + 2 * self.n, 2)); self.n += 1
    def dump(self, srd_ws, s_w, base=0, vt=250):
        if not self.on: return
        a = self.a
        a.s_memtime(s(68 + 2 * self.n, 2)); n = self.n + 1
        a.s_memrealtime(s(66, 2))
        a.s_waitcnt("lgkmcnt(0)")
        a.v_mov_b32(v(vt), 0)
        for i in range(n): a.v_writelane_b32(v(vt), s(68 + 2 * i), i)
        a.v_writelane_b32(v(vt), s(66), 31)
        a.v_mbcnt_lo_u32_b32(v(vt + 1), -1, 0); a.v_mbcnt_hi_u32_b32(v(vt + 1), -1, v(vt + 1)); a.v_lshlrev_b32(v(vt + 1), 2, v(vt + 1))
        a.s_lshl_b32(s(66), s(2), 3); a.s_add_u32(s(66), s(66), s(s_w)); a.s_lshl_b32(s(66), s(66), 8); a.s_add_u32(s(66), s(66), hx(WS_STAMP + base))
        a.buffer_store_dword(v(vt), v(vt + 1), s(srd_ws, 4), s(66), mods="offen")
```

```python
import sys
from common import *

MF32 = "v_mfma_f32_32x32x16_bf16"
MF16 = "v_mfma_f32_16x16x32_bf16"
KNAME = NAME + "_kernel"
OPT = dict(stamp=False)

XF = 128; ACCA, ACCB = 96, 112; WB = [32, 64]
V_L = 1; V_VX0 = 2; V_VX1 = 3; V_VW = 4; V_AX = 5; V_AA = 9; V_AB = 10; V_E = 11; T = 12
V_TA = 2
V_D2 = 6; V_16 = 7; V_G0 = 8; V_PT = 10
V_C1 = 244; V_P2 = 245; V_AS = 246; V_X1 = 247; V_X2 = 248; V_X3 = 249; V_X4 = 250
SRD_X, SRD_W, SRD_WS, SRD_AUX, SRD_GW, SRD_W2, SRD_WO, SRD_B2, SRD_OUT, SRD_DBG = 4, 8, 12, 16, 20, 24, 28, 32, 36, 40
S_R, S_C, S_ROT, S_W, S_KC, S_SX, S_SW, S_XB, S_CB, S_TT, S_CT, S_L = 44, 45, 46, 47, 48, 49, 50, 51, 52, 53, 54, 55
S_A = 56
S_T = 62
S_CNT = 3
STG = [65536, 0, 32768, 98304, 65536, 0, 32768]
L_P2 = 98304; L_S = 65536; L_MISC = 155648
L_SCR = [65536, 0]
SPIN = 200000
FL_H = WS_FLAG; FL_O = WS_FLAG + 65536

class Side:
    def __init__(self, ops=()): self.ops = list(ops)
    def add(self, ops): self.ops += list(ops)
    def step(self, n=1):
        for _ in range(n):
            if self.ops: self.ops.pop(0)()
    def flush(self):
        while self.ops: self.ops.pop(0)()

def next_kc(a):
    a.s_add_u32(s(S_KC), s(S_KC), 1)
    a.s_cmp_eq_u32(s(S_KC), 7)
    a.s_cselect_b32(s(S_KC), 0, s(S_KC))

def m0_set(a, shift, base):
    a.s_lshl_b32(s(S_CNT), s(S_W), shift)
    a.s_add_u32("m0", s(S_CNT), hx(base))

def stage_ops(a, st, attn):
    stride = 2688 if attn else 3584
    base = STG[st]
    def x0():
        a.s_lshl_b32(s(S_SX), s(S_KC), 7); a.s_add_u32(s(S_SX), s(S_SX), s(S_XB))
        m0_set(a, 11, base)
        a.buffer_load_dwordx4(v(V_VX0), s(SRD_X, 4), s(S_SX), mods="offen lds")
    def x1():
        m0_set(a, 11, base + 1024)
        a.buffer_load_dwordx4(v(V_VX1), s(SRD_X, 4), s(S_SX), mods="offen lds")
    def w0():
        a.s_mul_i32(s(S_SW), s(S_KC), 64 * stride); a.s_add_u32(s(S_SW), s(S_SW), s(S_CB))
        m0_set(a, 10, base + 16384)
        a.buffer_load_dwordx4(v(V_VW), s(SRD_W, 4), s(S_SW), mods="offen lds")
    def w1():
        a.s_add_u32(s(S_SW), s(S_SW), 896 if attn else 128)
        m0_set(a, 10, base + 16384 + 8192)
        a.buffer_load_dwordx4(v(V_VW), s(SRD_W, 4), s(S_SW), mods="offen lds")
        next_kc(a)
    return [x0, w0, x1, w1]

def p2_ops(a, chunks, attn, s_colbyte, s_mask=None):
    stride = 2688 if attn else 3584
    def mk(ch):
        def f():
            a.s_mul_i32(s(S_SW), s(S_KC), 64 * stride); a.s_add_u32(s(S_SW), s(S_SW), s(s_colbyte))
            m0_set(a, 10, L_P2 + ch * 8192)
            if attn: a.s_mov_b64("exec", s(s_mask, 2))
            a.buffer_load_dwordx4(v(V_VW), s(SRD_W, 4), s(S_SW), mods="offen lds")
            if attn: a.s_mov_b64("exec", -1)
            next_kc(a)
        return f
    return [mk(ch) for ch in chunks]

def frag_reads(st):
    r = []; wb = WB[st & 1]; o = STG[st] & 65535
    for t in range(4):
        r.append(("ds_read_b128", v(XF + st * 16 + t * 4, 4), v(V_AX + t), o))
        for tile, ad in ((0, V_AA), (1, V_AB)):
            for m in range(2):
                r.append(("ds_read_b64_tr_b16", v(wb + t * 8 + tile * 4 + m * 2, 2), v(ad), o + 16384 + t * 2048 + m * 512))
    return r

def emit_reads(a, rs):
    for op, d, ad, off in rs:
        a.I(op, d, ad, mods=f"offset:{off}" if off else "")

def window_fix(a, st_from, st_to):
    d = (STG[st_to] & ~65535) - (STG[st_from] & ~65535)
    if d:
        for r in range(V_AX, V_AB + 1): a.v_add_u32(v(r), hx(d), v(r))

def pass1(a, ST, attn, marks, units, first, extra):
    ST()
    a.wait_vm(marks[0]); a.s_barrier()
    ST()
    rs = frag_reads(0); side = Side(units[0][1])
    for i in range(4):
        emit_reads(a, rs[5 * i:5 * i + 5]); side.step()
    side.flush(); marks[units[0][0]] = a.mark()
    for st in range(7):
        if st < 6:
            a.wait_vm(marks[st + 1], lgkm=0); a.s_barrier()
        else:
            a.wait(lgkm=0)
        if st in (0, 2, 4, 6): ST()
        if st == 0: first()
        name, ops = units[st + 1]
        side = Side(ops); ex = Side(extra.get(st, []))
        rs = frag_reads(st + 1) if st < 6 else []
        wb = WB[st & 1]; k = 0
        for t in range(4):
            for tile, acc in ((0, ACCA), (1, ACCB)):
                c = v(acc, 16)
                if attn and st == 0 and t == 0: c = "0"
                a.I(MF32, v(acc, 16), v(wb + t * 8 + tile * 4, 4), v(XF + st * 16 + t * 4, 4), c)
                if t == 0 and tile == 0 and st < 6: window_fix(a, st, st + 1)
                n = 3 if tile == 0 else 2
                emit_reads(a, rs[k:k + n]); k += n
                if tile == 1: side.step()
                ex.step()
        side.flush(); ex.flush()
        if name is not None: marks[name] = a.mark()

def pass2_tile(a, acc, addr, rowbytes, fb, side=None, every=3, bias=None, depth=8, at=None):
    def rd(i):
        b = fb + (i % depth) * 4
        for m in range(2):
            a.ds_read_b64_tr_b16(v(b + 2 * m, 2), v(addr), mods=f"offset:{(i * 16 + 4 * m) * rowbytes}")
    pre = depth - 1
    for i in range(pre): rd(i)
    if bias is not None: a.I(MF32, v(acc, 16), v(bias, 4), v(28, 4), "0")
    for i in range(28):
        outstanding = min(27, i + pre - 1) - i
        a.wait(lgkm=min(15, 2 * outstanding))
        c = "0" if (bias is None and i == 0) else v(acc, 16)
        a.I(MF32, v(acc, 16), v(fb + (i % depth) * 4, 4), v(XF + i * 4, 4), c)
        if i + pre < 28: rd(i + pre)
        if side and i % every == every - 1: side.step()
        if at and i in at: at[i]()

def gelu_tile(a, acc, s_c2, s_off, side=None, per=1):
    tmp = T
    def sd():
        if side: side.step(per)
    for h in range(2):
        b = acc + 8 * h
        for i in range(8): a.v_mul_f32(v(tmp + i), v(b + i), v(b + i))
        for i in range(8): a.v_fma_f32(v(tmp + i), v(tmp + i), s(s_c2), v(V_C1))
        sd()
        for i in range(8): a.v_mul_f32(v(tmp + i), v(tmp + i), v(b + i))
        sd()
        for i in range(8): a.v_exp_f32(v(tmp + i), v(tmp + i))
        sd()
        for i in range(8): a.v_add_f32(v(tmp + i), 1.0, v(tmp + i))
        sd()
        for i in range(8): a.v_rcp_f32(v(tmp + i), v(tmp + i))
        sd()
        for i in range(8): a.v_mul_f32(v(tmp + i), v(tmp + i), v(b + i))
        for i in range(4): a.v_cvt_pk_bf16_f32(v(b + i), v(tmp + 2 * i), v(tmp + 2 * i + 1))
        a.buffer_store_dwordx4(v(b, 4), v(V_16), s(SRD_WS, 4), s(s_off), mods="offen" + (" offset:1024" if h else "") + " sc1")

def xhalf(a, op, x, t):
    a.v_mov_b32(v(t), v(x))
    a.v_permlane32_swap_b32(v(x), v(t))
    a.I(op, v(x), v(x), v(t))

def softmax_pm(a, P, E, TT, side=None, per=1, late=None):
    mx, mn, t1, sp, sm = TT, TT + 1, TT + 2, TT + 3, TT + 4
    def sd():
        if side: side.step(per)
    a.v_max3_f32(v(mx), v(P), v(P + 1), v(P + 2)); a.v_min3_f32(v(mn), v(P), v(P + 1), v(P + 2))
    for i in range(3, 11, 2):
        a.v_max3_f32(v(mx), v(mx), v(P + i), v(P + i + 1)); a.v_min3_f32(v(mn), v(mn), v(P + i), v(P + i + 1))
    a.v_max_f32(v(mx), v(mx), v(P + 11)); a.v_min_f32(v(mn), v(mn), v(P + 11))
    for i in range(12, 16): a.v_mov_b32(v(E + i), 0)
    sd()
    a.s_mov_b32("exec_hi", 0)
    for i in (12, 14):
        a.v_max3_f32(v(mx), v(mx), v(P + i), v(P + i + 1)); a.v_min3_f32(v(mn), v(mn), v(P + i), v(P + i + 1))
    a.s_mov_b32("exec_hi", -1)
    xhalf(a, "v_max_f32", mx, t1); xhalf(a, "v_min_f32", mn, t1)
    a.v_mul_f32(v(mx), s(S_L), v(mx)); a.v_mul_f32(v(mn), s(S_L), v(mn))
    sd()
    def ex(rng, ok):
        for i in rng: a.v_fma_f32(v(E + i), "-" + v(P + i), s(S_L), v(mn))
        for i in rng: a.v_fma_f32(v(P + i), v(P + i), s(S_L), "-" + v(mx))
        if ok: sd()
        for i in rng: a.v_exp_f32(v(E + i), v(E + i))
        if ok: sd()
        for i in rng: a.v_exp_f32(v(P + i), v(P + i))
        if ok: sd()
    ex(range(0, 6), True); ex(range(6, 12), True)
    a.s_mov_b32("exec_hi", 0)
    ex(range(12, 16), False)
    a.s_mov_b32("exec_hi", -1)
    sd()
    a.v_add_f32(v(sp), v(P), v(P + 1)); a.v_add_f32(v(sm), v(E), v(E + 1))
    for i in range(2, 16):
        a.v_add_f32(v(sp), v(sp), v(P + i)); a.v_add_f32(v(sm), v(sm), v(E + i))
        if i == 8: sd()
    if side: side.flush()
    if late: late()
    xhalf(a, "v_add_f32", sp, t1); xhalf(a, "v_add_f32", sm, t1)
    a.v_rcp_f32(v(sp), v(sp)); a.v_rcp_f32(v(sm), v(sm))
    for i in range(16):
        a.v_mul_f32(v(P + i), v(P + i), v(sp)); a.v_mul_f32(v(E + i), v(E + i), v(sm))
    for i in range(8):
        a.v_cvt_pk_bf16_f32(v(P + i), v(P + 2 * i), v(P + 2 * i + 1))
        a.v_cvt_pk_bf16_f32(v(E + i), v(E + 2 * i), v(E + 2 * i + 1))

def pack16(a, acc):
    for i in range(8): a.v_cvt_pk_bf16_f32(v(acc + i), v(acc + 2 * i), v(acc + 2 * i + 1))

def dma_lane_setup(a, stride, attn):
    a.v_lshrrev_b32(v(T), 3, v(V_L))
    a.s_lshl_b32(s(S_T), s(S_W), 4)
    a.v_add_u32(v(T + 1), s(S_T), v(T))
    a.v_mul_u32_u24(v(T + 1), 896, v(T + 1))
    a.v_and_b32(v(T + 2), 7, v(V_L))
    a.v_lshrrev_b32(v(T + 3), 4, v(V_L))
    a.v_xor_b32(v(T + 3), v(T + 2), v(T + 3))
    a.v_lshl_add_u32(v(V_VX0), v(T + 3), 4, v(T + 1))
    a.v_xor_b32(v(V_VX1), 64, v(V_VX0))
    a.v_add_u32(v(V_VX1), 8 * 896, v(V_VX1))
    a.s_lshl_b32(s(S_T), s(S_W), 3)
    a.v_add_u32(v(T + 1), s(S_T), v(T))
    a.v_mul_u32_u24(v(T + 1), stride, v(T + 1))
    a.v_lshrrev_b32(v(T + 3), 2, v(V_L))
    a.v_and_b32(v(T + 3), 4, v(T + 3))
    a.v_xor_b32(v(T + 3), v(T + 2), v(T + 3))
    a.v_lshl_add_u32(v(V_VW), v(T + 3), 4, v(T + 1))
    if attn:
        a.v_cmp_eq_u32("vcc", 7, v(T + 3))
        a.v_mov_b32(v(T + 2), "0x7ffffff0")
        a.v_cndmask_b32(v(V_VW), v(V_VW), v(T + 2), "vcc")

def x_read_setup(a):
    a.s_and_b32(s(S_T), s(S_W), 3); a.s_lshl_b32(s(S_T), s(S_T), 5)
    a.v_and_b32(v(T), 31, v(V_L))
    a.v_add_u32(v(T), s(S_T), v(T))
    a.v_bfe_u32(v(T + 1), v(T), 1, 3)
    a.v_lshrrev_b32(v(T + 2), 5, v(V_L))
    a.v_xor_b32(v(T + 1), v(T + 1), v(T + 2))
    a.v_lshlrev_b32(v(T + 1), 4, v(T + 1))
    a.v_lshl_add_u32(v(V_AX), v(T), 7, v(T + 1))
    a.v_add_u32(v(V_AX), hx(STG[0] & ~65535), v(V_AX))
    for t in range(1, 4): a.v_xor_b32(v(V_AX + t), 32 * t, v(V_AX))

def tr_parts(a, d_row, d_col, d_sw, hishift):
    a.v_bfe_u32(v(d_row), v(V_L), 2, 2)
    a.v_lshrrev_b32(v(d_col), 5, v(V_L))
    a.v_lshl_add_u32(v(d_row), v(d_col), hishift, v(d_row))
    a.v_and_b32(v(d_col), 3, v(V_L)); a.v_lshlrev_b32(v(d_col), 3, v(d_col))
    a.v_and_b32(v(d_sw), 16, v(V_L))
    a.v_lshl_add_u32(v(d_col), v(d_sw), 1, v(d_col))
    a.v_and_b32(v(d_sw), 8, v(V_L)); a.v_lshlrev_b32(v(d_sw), 3, v(d_sw))

def poll(a, mark, load, check):
    done = a.uid("pd"); loop = a.uid("pl")
    a.wait_vm(mark); check(); a.s_cbranch_scc1(done)
    save = a.vmn
    a.s_mov_b32(s(S_CNT), SPIN)
    a.label(loop)
    a.s_sleep(1); load(); a.wait(vm=0); check(); a.s_cbranch_scc1(done)
    a.s_sub_u32(s(S_CNT), s(S_CNT), 1); a.s_cbranch_scc0(loop)
    a.label(done)
    a.vmn = save

def epoch_load(a): a.buffer_load_dword(v(V_E), "off", s(SRD_DBG, 4), 0, mods="sc1")
def epoch_check(a):
    a.v_cmp_ne_u32("vcc", 0, v(V_E)); a.s_cmp_eq_u64("vcc", "exec")

WR = 128; WRO = 64
S_D2, S_DO = 0, 1
def wreg(ks, ft): return (WR + ks * 8 if ks < 14 else WRO + (ks - 14) * 8) + ft * 4
def p2_setup_ops(a):
    def f1():
        a.v_lshrrev_b32(v(V_X1), 3, v(V_L)); a.v_mul_u32_u24(v(V_X1), 896, v(V_X1))
        a.v_and_b32(v(V_X2), 7, v(V_L)); a.v_lshrrev_b32(v(V_X3), 2, v(V_L))
    def f2():
        a.v_and_b32(v(V_X3), 4, v(V_X3)); a.v_xor_b32(v(V_X2), v(V_X2), v(V_X3))
        a.v_lshl_add_u32(v(V_D2), v(V_X2), 4, v(V_X1)); a.v_lshlrev_b32(v(V_16), 4, v(V_L))
        a.s_mul_i32(s(S_D2), s(S_W), 224 * 896); a.s_lshl_b32(s(S_T), s(S_CT), 7); a.s_add_u32(s(S_D2), s(S_D2), s(S_T))
        a.s_mul_i32(s(S_DO), s(S_W), 56 * 896); a.s_add_u32(s(S_DO), s(S_DO), s(S_T))
    def f3(): tr_parts(a, V_X1, V_X2, V_X3, 2)
    def f4():
        a.v_xor_b32(v(V_X2), v(V_X2), v(V_X3)); a.v_lshl_add_u32(v(V_X1), v(V_X1), 7, v(V_X2))
        a.s_lshl_b32(s(S_T), s(S_W), 13)
        a.v_add_u32(v(V_TA), s(S_T), v(V_X1)); a.v_xor_b32(v(V_TA + 1), 64, v(V_TA))
    def f5():
        a.s_mul_i32(s(S_T), s(S_W), 12288); a.s_add_u32(s(S_T), s(S_T), 65536)
        a.v_add_u32(v(V_TA + 2), s(S_T), v(V_X1)); a.v_xor_b32(v(V_TA + 3), 64, v(V_TA + 2))
    return [f1, f2, f3, f4, f5]
def w2_dma(a, region, n, wo=False):
    def mk(i):
        def f():
            if region == 0: m0_set(a, 13, i * 1024)
            else:
                a.s_mul_i32(s(S_CNT), s(S_W), 12288); a.s_add_u32("m0", s(S_CNT), 65536 + i * 1024)
            sr = S_DO if wo else S_D2
            a.buffer_load_dwordx4(v(V_D2), s(SRD_WO if wo else SRD_W2, 4), s(sr), mods="offen lds")
            a.s_add_u32(s(sr), s(sr), 8 * 896)
        return f
    return [mk(i) for i in range(n)]
def w2_tr(a, region, kss, rows):
    for ks, row0 in zip(kss, rows):
        for ft in range(2):
            for m in range(2):
                a.ds_read_b64_tr_b16(v(wreg(ks, ft) + 2 * m, 2), v(V_TA + 2 * region + ft), mods=f"offset:{(row0 + 8 * m) * 128}")
def T_A1(a, mk): a.wait_vm(mk); w2_tr(a, 0, range(0, 4), range(0, 64, 16))
def T_B1(a, mk): a.wait_vm(mk); w2_tr(a, 1, range(4, 10), range(0, 96, 16))
def T_A2(a, mk): a.wait_vm(mk); w2_tr(a, 0, range(10, 14), range(0, 64, 16))
def T_B2(a, mk): a.wait_vm(mk); w2_tr(a, 1, range(14, 18), [0, 16, 28, 44])

def flag_store(a, base):
    a.s_lshl_b32(s(S_T), s(S_R), 3); a.s_add_u32(s(S_T), s(S_T), s(S_C)); a.s_lshl_b32(s(S_T), s(S_T), 5)
    a.s_add_u32(s(S_T), s(S_T), s(S_W)); a.s_lshl_b32(s(S_T), s(S_T), 2); a.s_add_u32(s(S_T), s(S_T), hx(base))
    a.s_mov_b64("exec", 1)
    a.buffer_store_dword(v(V_E), "off", s(SRD_WS, 4), s(S_T), mods="sc1")
    a.s_mov_b64("exec", -1)

def load_ptr(a, srdn, off): a.s_load_dwordx2(s(srdn, 2), s(0, 2), off)

def entry(a, ST):
    kernel_begin(a, KNAME)
    a.s_cmp_ge_u32(s(2), 256); a.s_cbranch_scc1("the_end")
    ST.reset(); ST()
    load_ptr(a, SRD_X, KA_X)
    a.s_lshr_b32(s(S_T + 1), s(2), 6)
    a.s_cmp_lt_u32(s(S_T + 1), 2)
    a.s_cbranch_scc1("role_attn")

def entry2(a, attn):
    load_ptr(a, SRD_W, KA_WQKV if attn else KA_W1)
    load_ptr(a, SRD_AUX, KA_WPHI if attn else KA_B1)
    if attn: load_ptr(a, SRD_GW, KA_GW)
    load_ptr(a, SRD_WS, KA_WS); load_ptr(a, SRD_DBG, KA_DBG); load_ptr(a, SRD_W2, KA_W2); load_ptr(a, SRD_WO, KA_WO)
    load_ptr(a, SRD_B2, KA_B2); load_ptr(a, SRD_OUT, KA_OUT)
    a.v_and_b32(v(V_L), 63, v(0))
    a.v_lshrrev_b32(v(T), 6, v(0))
    a.v_readfirstlane_b32(s(S_W), v(T))
    t0, t1, t2, t3 = S_T, S_T + 1, S_T + 2, S_T + 3
    a.s_and_b32(s(t0), s(2), 7)
    a.s_lshr_b32(s(t2), s(t0), 2); a.s_lshl_b32(s(t2), s(t2), 3); a.s_bfe_u32(s(t3), s(2), hx(3 | (3 << 16)))
    a.s_add_u32(s(S_R), s(t2), s(t3))
    a.s_and_b32(s(t2), s(t0), 3); a.s_lshl_b32(s(t2), s(t2), 1); a.s_and_b32(s(t3), s(t1), 1)
    a.s_add_u32(s(S_C), s(t2), s(t3))
    a.s_lshl_b32(s(t2), s(t1), 1); a.s_add_u32(s(S_ROT), s(S_R), s(t2))
    a.s_mul_i32(s(t2), s(S_ROT), 37); a.s_lshr_b32(s(t2), s(t2), 8); a.s_mul_i32(s(t2), s(t2), 7)
    a.s_sub_u32(s(S_ROT), s(S_ROT), s(t2))
    a.s_mov_b32(s(S_KC), s(S_ROT))
    a.s_mul_i32(s(S_XB), s(S_R), 128 * 896)
    a.s_lshr_b32(s(t2), s(2), 3); a.s_max_u32(s(t2), s(t2), 4); a.s_sub_u32(s(t2), s(t2), 4)
    a.s_lshr_b32(s(S_CT), s(t2), 2); a.s_and_b32(s(t2), s(t2), 3); a.s_lshl_b32(s(t0), s(t0), 2); a.s_add_u32(s(S_TT), s(t0), s(t2))
    a.s_mov_b32(s(S_L), hx(LOG2E))
    for r, sz in ((SRD_X, SZ_X), (SRD_W, SZ_WQKV if attn else SZ_W1), (SRD_AUX, SZ_WPHI if attn else SZ_B1), (SRD_GW, SZ_GW), (SRD_WS, SZ_WS),
                  (SRD_DBG, 256), (SRD_W2, SZ_W2), (SRD_WO, SZ_WO), (SRD_B2, SZ_B2), (SRD_OUT, SZ_OUT)):
        if r == SRD_GW and not attn: continue
        srd(a, r, r, sz)
    dma_lane_setup(a, 2688 if attn else 3584, attn)

def ffn(a, ST):
    S_P2C, S_SS, S_C2 = 56, 57, 58
    S_E0 = 20
    t0, t1, t2 = S_T, S_T + 1, S_T + 2
    entry2(a, False)
    a.s_mul_i32(s(t0), s(S_C), 448); a.s_and_b32(s(t1), s(S_C), 1); a.s_lshl_b32(s(t2), s(t1), 6)
    a.s_add_u32(s(S_CB), s(t0), s(t2)); a.s_add_u32(s(S_P2C), s(S_CB), 256)
    a.s_cmp_eq_u32(s(t1), 0); a.s_cselect_b32(s(t2), 384, 0); a.s_add_u32(s(S_SS), s(t0), s(t2))
    a.s_waitcnt("lgkmcnt(0)")
    marks = {}
    Side(stage_ops(a, 0, False)).flush(); marks[0] = a.mark()
    a.s_lshr_b32(s(t0), s(S_W), 2)
    a.s_lshl_b32(s(t1), s(t0), 7); a.s_add_u32(s(S_E0), s(S_CB), s(t1))
    a.s_add_u32(s(S_E0 + 1), s(S_E0), 64)
    a.s_lshl_b32(s(t1), s(t0), 6); a.s_add_u32(s(S_E0 + 2), s(S_P2C), s(t1))
    a.s_mov_b32(s(S_E0 + 3), s(S_SS))
    a.v_and_b32(v(T), 31, v(V_L)); a.v_lshlrev_b32(v(T), 1, v(T))
    for tile in range(4):
        a.buffer_load_ushort(v(20 + 2 * tile), v(T), s(SRD_AUX, 4), s(S_E0 + tile), mods="offen")
    for st in (1, 2):
        Side(stage_ops(a, st, False)).flush(); marks[st] = a.mark()
    for r in (21, 23, 25, 27, 29, 30, 31): a.v_mov_b32(v(r), 0)
    a.v_mov_b32(v(28), "0x3f80")
    a.s_mov_b32("exec_lo", 0); a.v_mov_b32(v(28), 0); a.s_mov_b32("exec_lo", -1)
    x_read_setup(a)
    tr_parts(a, T, T + 1, T + 2, 3)
    a.s_lshr_b32(s(t0), s(S_W), 2)
    a.v_lshl_add_u32(v(V_AS), v(T), 6, v(T + 1)); a.v_add_u32(v(V_AS), hx(L_S), v(V_AS))
    a.v_xor_b32(v(T + 1), v(T + 1), v(T + 2))
    a.v_lshl_add_u32(v(T), v(T), 7, v(T + 1))
    a.s_lshl_b32(s(t1), s(t0), 13); a.s_add_u32(s(t1), s(t1), hx(STG[0] & ~65535))
    a.v_add_u32(v(V_AA), s(t1), v(T)); a.v_xor_b32(v(V_AB), 64, v(V_AA))
    a.s_lshl_b32(s(t1), s(t0), 6)
    a.v_xor_b32(v(V_P2), s(t1), v(T)); a.v_add_u32(v(V_P2), hx(L_P2), v(V_P2))
    a.v_mov_b32(v(V_C1), hx(f2u(-2.0 * 0.7978845608028654 * 1.4426950408889634)))
    a.s_mov_b32(s(S_C2), hx(f2u(-2.0 * 0.7978845608028654 * 0.044715 * 1.4426950408889634)))
    a.s_and_b32(s(t1), s(S_W), 3); a.s_lshl_b32(s(t2), s(S_R), 2); a.s_add_u32(s(t1), s(t1), s(t2))
    a.s_mul_i32(s(t1), s(t1), 114688)
    for tile in range(4):
        a.s_lshl_b32(s(S_E0 + tile), s(S_E0 + tile), 5); a.s_add_u32(s(S_E0 + tile), s(S_E0 + tile), s(t1))
    a.v_lshrrev_b32(v(V_X4), 2, v(V_L)); a.v_mul_u32_u24(v(V_X4), 3584, v(V_X4))
    a.v_and_b32(v(T), 3, v(V_L)); a.v_lshl_add_u32(v(V_X4), v(T), 4, v(V_X4))
    def first():
        a.I(MF32, v(ACCA, 16), v(20, 4), v(28, 4), "0"); a.I(MF32, v(ACCB, 16), v(22, 4), v(28, 4), "0")
    def s_op(i):
        def f():
            a.s_add_u32(s(t0), s(S_W), 8 * i); a.s_min_u32(s(t0), s(t0), 27)
            a.s_lshr_b32(s(t1), s(t0), 2); a.s_add_u32(s(t1), s(t1), s(S_ROT))
            a.s_cmp_ge_u32(s(t1), 7); a.s_cselect_b32(s(t2), 7, 0); a.s_sub_u32(s(t1), s(t1), s(t2))
            a.s_lshl_b32(s(t1), s(t1), 2); a.s_and_b32(s(t2), s(t0), 3); a.s_add_u32(s(t1), s(t1), s(t2))
            a.s_mul_i32(s(t1), s(t1), 16 * 3584); a.s_add_u32(s(t1), s(t1), s(S_SS))
            a.s_lshl_b32(s(t0), s(t0), 10); a.s_add_u32("m0", s(t0), hx(L_S))
            a.buffer_load_dwordx4(v(V_X4), s(SRD_W, 4), s(t1), mods="offen lds")
        return f
    units = [(3, stage_ops(a, 3, False)), (4, stage_ops(a, 4, False)), (5, stage_ops(a, 5, False)), (6, stage_ops(a, 6, False)),
             ("p2a", p2_ops(a, range(0, 4), False, S_P2C)), ("p2b", p2_ops(a, range(4, 7), False, S_P2C)),
             ("s", [s_op(i) for i in range(4)]), ("ep", [lambda: epoch_load(a)])]
    pass1(a, ST, False, marks, units, first, {6: p2_setup_ops(a)})
    ACCC, ACCD = 32, 48
    ST()
    a.wait_vm(marks["p2b"]); a.s_barrier()
    ST(); n0 = ST.n; vm0 = a.vmn
    a.s_cmp_ge_u32(s(S_W), 4); a.s_cbranch_scc1("ffn_ch1")
    sd = Side(w2_dma(a, 0, 8))
    pass2_tile(a, ACCC, V_P2, 128, 64, side=sd, bias=24); sd.flush(); mA1 = a.mark()
    a.wait_vm(marks["s"]); a.s_barrier()
    pass2_tile(a, ACCD, V_AS, 64, 64, bias=26)
    gelu_tile(a, ACCA, S_C2, S_E0)
    a.s_barrier()
    ST()
    T_A1(a, mA1)
    sd = Side(w2_dma(a, 1, 12)); sd.step(2)
    gelu_tile(a, ACCB, S_C2, S_E0 + 1, side=sd); sd.flush(); mB1 = a.mark()
    a.wait(lgkm=0)
    sd = Side(w2_dma(a, 0, 8))
    gelu_tile(a, ACCC, S_C2, S_E0 + 2, side=sd); sd.flush(); mA2 = a.mark()
    gelu_tile(a, ACCD, S_C2, S_E0 + 3); mH = a.mark()
    ST()
    poll(a, marks["ep"], lambda: epoch_load(a), lambda: epoch_check(a))
    T_B1(a, mB1); a.wait(lgkm=0)
    Side(w2_dma(a, 1, 8, wo=True)).flush(); mB2 = a.mark()
    a.wait_vm(mH); flag_store(a, FL_H)
    T_A2(a, mA2); T_B2(a, mB2)
    a.s_branch("phase2")
    a.label("ffn_ch1"); ST.reset(n0); a.vmn = vm0
    a.fence()
    sd = Side(w2_dma(a, 0, 8))
    gelu_tile(a, ACCA, S_C2, S_E0, side=sd); sd.flush(); mA1 = a.mark()
    a.wait_vm(marks["s"]); a.s_barrier()
    gelu_tile(a, ACCB, S_C2, S_E0 + 1)
    pass2_tile(a, ACCC, V_P2, 128, 64, bias=24)
    a.s_barrier()
    ST()
    T_A1(a, mA1)
    sd = Side(w2_dma(a, 1, 12)); sd.step(2)
    gelu_tile(a, ACCC, S_C2, S_E0 + 2, side=sd); sd.flush(); mB1 = mH = a.mark()
    ST()
    a.wait(lgkm=0)
    Side(w2_dma(a, 0, 8)).flush(); mA2 = a.mark()
    poll(a, marks["ep"], lambda: epoch_load(a), lambda: epoch_check(a))
    a.wait_vm(mH); flag_store(a, FL_H)
    T_B1(a, mB1); a.wait(lgkm=0)
    Side(w2_dma(a, 1, 8, wo=True)).flush(); mB2 = a.mark()
    T_A2(a, mA2); T_B2(a, mB2)
    a.s_branch("phase2")

def attn(a, ST):
    S_Q, S_HH, S_MSK = 56, 57, 58
    S_PA, S_PB = 60, 61
    t0, t1, t2 = S_T, S_T + 1, S_T + 2
    WP = 20; V_GW = 28; G = 30
    a.vmn = 0
    entry2(a, True)
    a.s_mul_i32(s(S_Q), s(S_C), 112); a.s_add_u32(s(S_CB), s(S_Q), 896)
    a.s_waitcnt("lgkmcnt(0)")
    marks = {}
    Side(stage_ops(a, 0, True)).flush(); marks[0] = a.mark()
    a.s_lshr_b32(s(S_HH), s(S_W), 2)
    a.v_lshlrev_b32(v(T), 4, v(V_L))
    a.s_and_b32(s(t0), s(S_W), 3); a.s_lshl_b32(s(t0), s(t0), 10); a.s_add_u32("m0", s(t0), hx(L_MISC))
    a.s_mul_i32(s(t1), s(S_C), 3136); a.s_add_u32(s(t1), s(t1), s(t0))
    a.buffer_load_dwordx4(v(T), s(SRD_AUX, 4), s(t1), mods="offen lds")
    a.s_add_u32(s(t0), s(S_W), s(S_ROT)); a.s_cmp_ge_u32(s(t0), 7); a.s_cselect_b32(s(t1), 7, 0); a.s_sub_u32(s(t0), s(t0), s(t1))
    a.s_lshl_b32(s(t0), s(t0), 7)
    a.v_lshlrev_b32(v(T), 1, v(V_L))
    a.buffer_load_ushort(v(V_GW), v(T), s(SRD_GW, 4), s(t0), mods="offen")
    for st in (1, 2):
        Side(stage_ops(a, st, True)).flush(); marks[st] = a.mark()
    a.s_or_b32(s(t0), s(2), s(S_W)); a.s_cmp_lg_u32(s(t0), 0); a.s_cbranch_scc1("no_epoch")
    a.s_memrealtime(s(S_T + 2, 2)); a.s_waitcnt("lgkmcnt(0)")
    a.s_or_b32(s(t2), s(t2), 1); a.v_mov_b32(v(T), s(t2))
    save = a.vmn
    a.s_mov_b64("exec", 1)
    a.buffer_store_dword(v(T), "off", s(SRD_DBG, 4), 0, mods="sc1")
    a.s_mov_b64("exec", -1)
    a.vmn = save
    a.label("no_epoch")
    a.s_mov_b32(s(S_MSK), "0xf7f77f7f"); a.s_mov_b32(s(S_MSK + 1), "0xf7f77f7f")
    x_read_setup(a)
    tr_parts(a, T, T + 1, T + 2, 3)
    a.v_cmp_eq_u32("vcc", 56, v(T + 1))
    a.s_mul_i32(s(t0), s(S_HH), 56)
    a.v_add_u32(v(T + 1), s(t0), v(T + 1))
    a.v_mov_b32(v(T + 4), 112)
    a.v_cndmask_b32(v(T + 4), v(T + 1), v(T + 4), "vcc")
    a.v_xor_b32(v(T + 4), v(T + 4), v(T + 2))
    a.v_lshl_add_u32(v(T), v(T), 7, v(T + 4))
    a.v_add_u32(v(V_AA), hx(STG[0] & ~65535), v(T)); a.v_add_u32(v(V_AB), hx(8192), v(V_AA))
    a.v_add_u32(v(V_P2), hx(L_P2), v(T))
    def gate_write():
        a.v_mov_b32(v(V_GW + 1), 0)
        a.v_and_b32(v(T), 2, v(0)); a.v_lshlrev_b32(v(T), 5, v(T)); a.v_xor_b32(v(T), 112, v(T))
        a.v_lshl_add_u32(v(T), v(0), 7, v(T)); a.v_add_u32(v(T), hx(L_P2), v(T))
        a.s_cmp_eq_u32(s(S_W), 7); l = a.uid("gw"); a.s_cbranch_scc1(l)
        a.ds_write_b64(v(T), v(V_GW, 2))
        a.label(l)
    def wphi1():
        tr_parts(a, T, T + 1, T + 2, 2)
    def wphi2():
        a.v_mul_u32_u24(v(T), 56, v(T)); a.s_mul_i32(s(t0), s(S_HH), 1568); a.s_add_u32(s(t0), s(t0), hx(L_MISC))
        a.v_add3_u32(v(T), v(T), v(T + 1), s(t0))
        for t in range(2):
            for m in range(2):
                a.ds_read_b64_tr_b16(v(WP + 4 * t + 2 * m, 2), v(T), mods=f"offset:{(16 * t + 8 * m) * 56}")
    def wphi3():
        a.s_mov_b32("exec_lo", "0xf0000000"); a.s_mov_b32("exec_hi", "0xf0000000")
        for i in range(6): a.v_mov_b32(v(WP + i), 0)
        a.s_mov_b32("exec_hi", -1)
        for i in (6, 7): a.v_mov_b32(v(WP + i), 0)
        a.s_mov_b32("exec_lo", -1)
    V_SW, V_SR = 251, 252
    def scr1():
        a.s_cmp_eq_u32(s(S_HH), 0); a.s_cselect_b32(s(t0), hx(L_SCR[0]), L_SCR[1])
        a.s_and_b32(s(t1), s(S_W), 3); a.s_mul_i32(s(t2), s(t1), 6400); a.s_add_u32(s(t2), s(t2), s(t0))
        a.v_and_b32(v(T), 31, v(V_L)); a.v_mul_u32_u24(v(T), 200, v(T))
        a.v_lshrrev_b32(v(T + 1), 5, v(V_L)); a.v_lshl_add_u32(v(T), v(T + 1), 3, v(T)); a.v_add_u32(v(V_SW), s(t2), v(T))
        a.v_bfe_u32(v(T), v(V_L), 2, 3); a.v_lshlrev_b32(v(T), 1, v(T)); a.v_add_u32(v(T), v(T), v(T + 1))
        a.v_mul_u32_u24(v(T), 400, v(T))
        a.v_and_b32(v(T + 1), 3, v(V_L)); a.v_lshl_add_u32(v(T), v(T + 1), 3, v(T)); a.v_add_u32(v(V_SR), s(t0), v(T))
        a.s_lshl_b32(s(t1), s(t1), 5)
        a.v_add_u32(v(V_SR + 1), s(t1), v(V_SR))
    V_PS, V_RL = 254, 255
    def scr2():
        a.v_lshrrev_b32(v(T), 5, v(V_L)); a.v_lshlrev_b32(v(T), 14, v(T))
        a.v_and_b32(v(T + 1), 16, v(V_L)); a.v_lshl_add_u32(v(T), v(T + 1), 5, v(T))
        a.v_and_b32(v(T + 1), 15, v(V_L)); a.v_lshl_add_u32(v(V_PS), v(T + 1), 4, v(T))
        a.s_lshl_b32(s(t0), s(S_C), 4); a.s_lshl_b32(s(t1), s(S_W), 1); a.s_add_u32(s(t1), s(t1), s(t0))
        a.s_lshl_b32(s(t1), s(t1), 4); a.s_add_u32(s(t1), s(t1), s(S_R)); a.s_lshl_b32(s(t1), s(t1), 10)
        a.s_add_u32(s(S_PA), s(t1), hx(WS_KVP))
        a.v_lshrrev_b32(v(T), 3, v(V_L)); a.v_lshlrev_b32(v(T), 10, v(T))
        a.v_and_b32(v(T + 1), 7, v(V_L)); a.v_lshl_add_u32(v(V_RL), v(T + 1), 4, v(T))
        a.s_add_u32(s(t0), s(t0), s(S_R)); a.s_lshl_b32(s(t0), s(t0), 14); a.s_lshl_b32(s(t1), s(S_W), 7)
        a.s_add_u32(s(t0), s(t0), s(t1)); a.s_add_u32(s(S_PB), s(t0), hx(WS_KVP))
    units = [(3, stage_ops(a, 3, True)), (4, stage_ops(a, 4, True)), (5, stage_ops(a, 5, True)), (6, stage_ops(a, 6, True)),
             ("p2a", p2_ops(a, range(0, 4), True, S_Q, S_MSK)), ("p2b", p2_ops(a, range(4, 7), True, S_Q, S_MSK)),
             ("ep", [lambda: epoch_load(a)]), (None, [])]
    extra = {1: [wphi1, wphi2], 2: [wphi3, scr1, scr2], 4: [gate_write], 6: p2_setup_ops(a)}
    pass1(a, ST, True, marks, units, lambda: None, extra)
    ST()
    P, E, TT = 32, 48, 12
    pack16(a, ACCA)
    a.I(MF32, v(P, 16), v(WP, 4), v(ACCA, 4), "0")
    a.I(MF32, v(P, 16), v(WP + 4, 4), v(ACCA + 4, 4), v(P, 16))
    pack16(a, ACCB)
    a.s_mov_b32("exec_lo", 0)
    a.v_mov_b32(v(ACCB + 6), "0x3f80"); a.v_mov_b32(v(ACCB + 7), 0)
    a.s_mov_b32("exec_lo", -1)
    for q in range(4): a.ds_write_b64(v(V_SW), v(ACCB + 2 * q, 2), mods=f"offset:{128 + 16 * q}")
    softmax_pm(a, P, E, TT)
    for q in range(4):
        a.ds_write_b64(v(V_SW), v(P + 2 * q, 2), mods=f"offset:{16 * q}")
        a.ds_write_b64(v(V_SW), v(E + 2 * q, 2), mods=f"offset:{64 + 16 * q}")
    poll(a, marks["ep"], lambda: epoch_load(a), lambda: epoch_check(a))
    a.wait(lgkm=0); a.s_barrier()
    ST()
    FA, FB, KV = 32, 48, 80
    for ks in range(4):
        for m in range(2):
            a.ds_read_b64_tr_b16(v(FA + ks * 4 + 2 * m, 2), v(V_SR + 1), mods=f"offset:{ks * 6400 + m * 200}")
        for dt in range(2):
            for m in range(2):
                a.ds_read_b64_tr_b16(v(FB + ks * 8 + dt * 4 + 2 * m, 2), v(V_SR), mods=f"offset:{ks * 6400 + m * 200 + 128 + 32 * dt}")
    for i in range(4): a.s_mov_b32(s(S_T + i), hx(0x07060500 + i))
    for ks in range(4):
        a.wait(lgkm=min(15, 6 * (3 - ks)))
        for dt in range(2):
            a.I(MF16, v(KV + dt * 4, 4), v(FA + ks * 4, 4), v(FB + ks * 8 + dt * 4, 4), "0" if ks == 0 else v(KV + dt * 4, 4))
    a.s_barrier()
    for dt in range(2):
        for i in range(4): a.v_perm_b32(v(KV + dt * 4 + i), v(KV + dt * 4 + i), v(V_E), s(S_T + i))
        a.buffer_store_dwordx4(v(KV + dt * 4, 4), v(V_PS), s(SRD_WS, 4), s(S_PA), mods=f"offen offset:{dt * 256} sc1")
    RD = 112
    def red_load():
        a.buffer_load_dwordx4(v(RD, 4), v(V_RL), s(SRD_WS, 4), s(S_PB), mods="offen sc1")
        a.s_add_u32(s(S_T), s(S_PB), 8192)
        a.buffer_load_dwordx4(v(RD + 4, 4), v(V_RL), s(SRD_WS, 4), s(S_T), mods="offen sc1")
    S_SA, S_SB = 58, 59
    def tag_check(regs):
        for i, r in enumerate(regs):
            a.v_perm_b32(v(V_X1), v(r + 1), v(r), s(S_SA)); a.v_perm_b32(v(V_X2), v(r + 3), v(r + 2), s(S_SB))
            if i == 0:
                a.v_or_b32(v(V_X1), v(V_X1), v(V_X2)); a.v_xor_b32(v(V_X3), v(V_X1), v(V_E))
            else:
                a.v_or_b32(v(V_X1), v(V_X1), v(V_X2)); a.v_xor_b32(v(V_X1), v(V_X1), v(V_E)); a.v_or_b32(v(V_X3), v(V_X3), v(V_X1))
        a.v_cmp_eq_u32("vcc", 0, v(V_X3)); a.s_cmp_eq_u64("vcc", "exec")
    a.s_mov_b32(s(S_SA), "0x0c0c0400"); a.s_mov_b32(s(S_SB), "0x04000c0c")
    sd = Side(w2_dma(a, 0, 8)); mk = {}
    def at_red():
        sd.flush(); mk["A1"] = a.mark(); red_load(); mk["red"] = a.mark()
    pass2_tile(a, ACCA, V_P2, 128, 32, side=sd, every=2, at={24: at_red})
    a.s_barrier()
    ST()
    T_A1(a, mk["A1"])
    a.v_mov_b32(v(G), v(ACCA + 12)); a.v_mov_b32(v(G + 1), v(ACCA + 12))
    a.v_permlane32_swap_b32(v(G + 1), v(G))
    pack16(a, ACCA)
    a.I(MF32, v(P, 16), v(WP, 4), v(ACCA, 4), "0")
    a.I(MF32, v(P, 16), v(WP + 4, 4), v(ACCA + 4, 4), v(P, 16))
    a.v_mul_f32(v(G), s(S_L), v(G)); a.v_exp_f32(v(G), "-" + v(G)); a.v_add_f32(v(G), 1.0, v(G)); a.v_rcp_f32(v(G), v(G))
    poll(a, mk["red"], red_load, lambda: tag_check([RD, RD + 4]))
    a.fence()
    for i in range(4): a.v_add_f32(v(RD + i), v(RD + i), v(RD + 4 + i))
    a.v_permlane16_swap_b32(v(RD), v(RD + 1)); a.v_permlane16_swap_b32(v(RD + 2), v(RD + 3))
    a.v_add_f32(v(RD), v(RD), v(RD + 1)); a.v_add_f32(v(RD + 2), v(RD + 2), v(RD + 3))
    a.v_permlane32_swap_b32(v(RD), v(RD + 2))
    a.v_add_f32(v(RD), v(RD), v(RD + 2))
    a.v_lshrrev_b32(v(V_X1), 4, v(V_L)); a.v_lshlrev_b32(v(V_X2), 3, v(V_X1)); a.v_lshrrev_b32(v(V_X2), v(V_X2), v(V_E))
    a.I("v_add_f32_dpp", v(RD), v(RD), v(RD), mods="row_ror:8 row_mask:0xf bank_mask:0xf")
    a.s_mov_b32(s(t0), 0xff)
    a.v_and_b32(v(V_X3), 7, v(V_L)); a.v_lshlrev_b32(v(V_X3), 4, v(V_X3)); a.v_lshl_add_u32(v(V_X3), v(V_X1), 2, v(V_X3))
    a.v_bfi_b32(v(RD), s(t0), v(V_X2), v(RD))
    a.s_lshl_b32(s(t0), s(S_C), 4); a.s_add_u32(s(t1), s(t0), s(S_R)); a.s_lshl_b32(s(t1), s(t1), 10)
    a.s_lshl_b32(s(t2), s(S_W), 7); a.s_add_u32(s(t1), s(t1), s(t2)); a.s_add_u32(s(t1), s(t1), hx(WS_KVR))
    a.s_mov_b32("exec_lo", "0x00ff00ff"); a.s_mov_b32("exec_hi", "0x00ff00ff")
    a.buffer_store_dword(v(RD), v(V_X3), s(SRD_WS, 4), s(t1), mods="offen sc1")
    a.s_mov_b64("exec", -1)
    ST()
    a.s_lshl_b32(s(t1), s(S_HH), 3); a.s_add_u32(s(t0), s(t0), s(t1)); a.s_lshl_b32(s(t0), s(t0), 10); a.s_add_u32(s(S_PA), s(t0), hx(WS_KVR))
    a.s_add_u32(s(S_PB), s(S_PA), 4096)
    KF = 96
    def kv_load():
        for i in range(8):
            a.buffer_load_dwordx4(v(KF + 4 * i, 4), v(V_16), s(SRD_WS, 4), s(S_PA if i < 4 else S_PB), mods=f"offen offset:{(i % 4) * 1024} sc1")
    a.wait(lgkm=0)
    def setmark(n): return lambda: mk.__setitem__(n, a.mark())
    sd = Side(w2_dma(a, 1, 12) + [setmark("B1")] + w2_dma(a, 0, 8) + [setmark("A2")])
    def late():
        kv_load(); mk["kv"] = a.mark()
    softmax_pm(a, P, E, TT, side=sd, per=2, late=late)
    ST()
    poll(a, mk["kv"], kv_load, lambda: tag_check([KF + 4 * i for i in range(8)]))
    a.fence()
    for i in range(16): a.v_cvt_pk_bf16_f32(v(KF + i), v(KF + 2 * i), v(KF + 2 * i + 1))
    D = 112
    for t in range(4):
        pq = P + 4 * t if t < 2 else E + 4 * (t - 2)
        a.I(MF32, v(D, 16), v(KF + 4 * t, 4), v(pq, 4), "0" if t == 0 else v(D, 16))
    T_B1(a, mk["B1"])
    a.s_and_b32(s(t0), s(S_W), 3); a.s_lshl_b32(s(t1), s(S_R), 2); a.s_add_u32(s(t0), s(t0), s(t1))
    a.s_lshl_b32(s(t0), s(t0), 3); a.s_add_u32(s(t0), s(t0), s(S_C)); a.s_lshl_b32(s(t0), s(t0), 1)
    a.s_add_u32(s(t0), s(t0), s(S_HH)); a.s_lshl_b32(s(t0), s(t0), 11); a.s_add_u32(s(S_PA), s(t0), hx(WS_O))
    a.s_lshl_b32(s(t0), s(S_R), 3); a.s_add_u32(s(t0), s(t0), s(S_C)); a.s_lshl_b32(s(t0), s(t0), 9)
    a.s_and_b32(s(t1), s(S_W), 3); a.s_lshl_b32(s(t1), s(t1), 7); a.s_add_u32(s(t0), s(t0), s(t1)); a.s_add_u32(s(S_PB), s(t0), hx(WS_G))
    a.v_mov_b32(v(12), v(D + 12)); a.v_mov_b32(v(13), v(D + 12))
    a.v_permlane32_swap_b32(v(13), v(12))
    a.v_add_f32(v(12), hx(f2u(1e-6)), v(12)); a.v_rcp_f32(v(12), v(12)); a.v_mul_f32(v(12), v(12), v(G))
    a.v_sub_f32(v(G), 1.0, v(G))
    a.v_and_b32(v(13), 31, v(V_L)); a.v_lshlrev_b32(v(13), 2, v(13))
    for i in range(16): a.v_mul_f32(v(D + i), v(D + i), v(12))
    pack16(a, D)
    a.s_mov_b32("exec_lo", 0); a.v_mov_b32(v(D + 6), 0); a.v_mov_b32(v(D + 7), 0); a.s_mov_b32("exec_lo", -1)
    for t in range(2): a.buffer_store_dwordx4(v(D + 4 * t, 4), v(V_16), s(SRD_WS, 4), s(S_PA), mods=f"offen offset:{t * 1024} sc1")
    a.s_mov_b32("exec_hi", 0)
    a.buffer_store_dword(v(G), v(13), s(SRD_WS, 4), s(S_PB), mods="offen sc1")
    a.s_mov_b32("exec_hi", -1)
    mO = a.mark()
    a.wait(lgkm=0)
    Side(w2_dma(a, 1, 8, wo=True)).flush(); mB2 = a.mark()
    a.wait_vm(mO); flag_store(a, FL_O)
    a.s_cmp_lt_u32(s(2), 32); a.s_cbranch_scc1("attn_exit")
    T_A2(a, mk["A2"]); T_B2(a, mB2)

def phase2(a, ST):
    a.label("phase2")
    a.vmn = 0
    ST.reset(11); ST()
    t0, t1, t2 = S_T, S_T + 1, S_T + 2
    S_H0, S_H1, S_O0, S_O1, S_GG, S_FL = 56, 57, 58, 59, 60, 61
    ACC = [[32, 48], [96, 112]]
    a.s_lshr_b32(s(t0), s(S_TT), 1); a.s_lshl_b32(s(t0), s(t0), 3); a.s_add_u32(s(t0), s(t0), s(S_W))
    a.s_and_b32(s(t1), s(S_TT), 1)
    a.s_lshl_b32(s(S_FL), s(t0), 7); a.s_lshl_b32(s(t2), s(t1), 3); a.s_add_u32(s(S_FL), s(S_FL), s(t2)); a.s_add_u32(s(S_FL), s(S_FL), hx(FL_H))
    a.v_and_b32(v(2), 1, v(V_L)); a.v_and_b32(v(3), 2, v(V_L)); a.v_lshlrev_b32(v(3), 3, v(3)); a.v_lshl_add_u32(v(2), v(2), 2, v(3))
    def fl_load(): a.buffer_load_dword(v(V_PT), v(2), s(SRD_WS, 4), s(S_FL), mods="offen sc1")
    def fl_check(): a.v_cmp_eq_u32("vcc", v(V_PT), v(V_E)); a.s_cmp_eq_u64("vcc", "exec")
    fl_load(); m = a.mark()
    a.s_lshl_b32(s(S_GG), s(t0), 9); a.s_lshl_b32(s(t1), s(t1), 8); a.s_add_u32(s(S_GG), s(S_GG), s(t1)); a.s_add_u32(s(S_GG), s(S_GG), hx(WS_G))
    a.s_lshl_b32(s(t0), s(S_TT), 1); a.s_mul_i32(s(S_H0), s(t0), 114688); a.s_mul_i32(s(t1), s(S_W), 14336); a.s_add_u32(s(S_H0), s(S_H0), s(t1))
    a.s_add_u32(s(S_H1), s(S_H0), 114688)
    a.s_lshl_b32(s(t0), s(t0), 3); a.s_add_u32(s(t0), s(t0), s(S_W)); a.s_lshl_b32(s(t0), s(t0), 12); a.s_add_u32(s(S_O0), s(t0), hx(WS_O))
    a.s_add_u32(s(S_O1), s(S_O0), 32768)
    a.v_and_b32(v(3), 31, v(V_L)); a.v_lshlrev_b32(v(3), 2, v(3))
    poll(a, m, fl_load, fl_check)
    a.s_add_u32(s(S_FL), s(S_FL), FL_O - FL_H)
    ST()
    free = [12, 16, 20, 24, 28, 240, 244, 248, 252]
    buf = {}; mk = {}
    def aload(n):
        ks, tt = n >> 1, n & 1
        if ks < 14:
            sr = S_H0 + tt
            if ks % 4 == 0 and ks: a.s_add_u32(s(sr), s(sr), 4096)
            off = (ks % 4) * 1024
        else:
            sr = S_O0 + tt; off = (ks - 14) * 1024
        buf[n] = free.pop(0)
        a.buffer_load_dwordx4(v(buf[n], 4), v(V_16), s(SRD_WS, 4), s(sr), mods=f"offen offset:{off} sc1")
        mk[n] = a.mark()
    nxt = 0
    while free and nxt < 28: aload(nxt); nxt += 1
    a.wait(lgkm=0)
    MAXFLY = 14
    for n in range(36):
        ks, tt = n >> 1, n & 1
        if n == 28:
            a.wait_vm(mk["g"])
            for ft in range(2):
                for t2_ in range(2):
                    for i in range(16): a.v_mul_f32(v(ACC[ft][t2_] + i), v(ACC[ft][t2_] + i), v(V_G0 + t2_))
        a.wait_vm(mk[n])
        for ft in range(2):
            acc = ACC[ft][tt]
            a.I(MF32, v(acc, 16), v(wreg(ks, ft), 4), v(buf[n], 4), "0" if ks == 0 else v(acc, 16))
        if n >= 1: free.append(buf[n - 1])
        if tt == 0 and ks >= 1: free += [wreg(ks - 1, 0), wreg(ks - 1, 1)]
        k = 0
        while free and nxt < 28 and nxt - n <= MAXFLY and k < 2:
            aload(nxt); nxt += 1; k += 1
            if nxt == 28:
                fl_load(); mk["fo"] = a.mark(); mk["fo_at"] = n
        if "fo" in mk and nxt == 28 and n == 21:
            poll(a, mk["fo"], fl_load, fl_check)
            for tt2 in range(2): a.buffer_load_dword(v(V_G0 + tt2), v(3), s(SRD_WS, 4), s(S_GG), mods=f"offen offset:{tt2 * 128} sc1")
            mk["g"] = a.mark()
            while nxt < 36: aload(nxt); nxt += 1
            a.v_lshrrev_b32(v(4), 3, v(0)); a.v_and_b32(v(5), 7, v(0))
            a.v_lshlrev_b32(v(6), 2, v(4)); a.v_lshlrev_b32(v(5), 4, v(5))
            a.s_lshl_b32(s(t1), s(S_CT), 7)
            EB = free.pop(0)
            a.buffer_load_dword(v(V_PT), v(6), s(SRD_WS, 4), s(S_GG), mods="offen sc1")
            a.buffer_load_dwordx4(v(EB, 4), v(5), s(SRD_B2, 4), s(t1), mods="offen")
    assert nxt == 36
    ST()
    a.s_barrier()
    a.s_mul_i32(s(t0), s(S_W), 17408)
    a.v_and_b32(v(2), 31, v(V_L)); a.v_mul_u32_u24(v(2), 272, v(2)); a.v_lshrrev_b32(v(3), 5, v(V_L)); a.v_lshl_add_u32(v(2), v(3), 7, v(2))
    a.v_add_u32(v(2), s(t0), v(2))
    for tt in range(2):
        for ft in range(2):
            for q in range(4):
                a.ds_write_b128(v(2), v(ACC[ft][tt] + 4 * q, 4), mods=f"offset:{tt * 32 * 272 + (4 * ft + q) * 16}")
    a.v_mul_u32_u24(v(2), 272, v(4)); a.v_add_u32(v(2), v(2), v(5))
    a.v_add_u32(v(3), 3 * 17408, v(2)); a.v_add_u32(v(6), 6 * 17408, v(2))
    OB = 64
    assert EB not in range(OB, OB + 8)
    a.wait(vm=0)
    for i in range(4):
        a.v_lshlrev_b32(v(OB + 2 * i), 16, v(EB + i)); a.v_and_b32(v(OB + 2 * i + 1), "0xffff0000", v(EB + i))
    for i in range(8): a.v_mul_f32(v(OB + i), v(OB + i), v(V_PT))
    a.v_mul_u32_u24(v(4), 896, v(4)); a.v_add_u32(v(4), v(4), v(5))
    a.s_mul_i32(s(t0), s(S_TT), 64 * 896); a.s_add_u32(s(t0), s(t0), s(t1))
    a.wait(lgkm=0); a.s_barrier()
    RB = 128
    for w in range(8):
        for h in range(2):
            a.ds_read_b128(v(RB + w * 8 + 4 * h, 4), v([2, 3, 6][w // 3]), mods=f"offset:{(w % 3) * 17408 + 128 * h}")
    for w in range(8):
        a.wait(lgkm=14 - 2 * w)
        for i in range(8): a.v_add_f32(v(OB + i), v(OB + i), v(RB + w * 8 + i))
    for i in range(4): a.v_cvt_pk_bf16_f32(v(OB + i), v(OB + 2 * i), v(OB + 2 * i + 1))
    a.buffer_store_dwordx4(v(OB, 4), v(4), s(SRD_OUT, 4), s(t0), mods="offen")
    a.label("attn_exit")
    ST.dump(SRD_WS, S_W, vt=40)
    a.label("the_end")
    a.s_endpgm()

def main(path, stamp):
    a = Asm()
    ST = Stamper(a, stamp)
    entry(a, ST)
    ffn(a, ST)
    a.label("role_attn"); ST.reset(1)
    attn(a, ST)
    phase2(a, ST)
    txt = HEADER
    txt += "; @launch grid=(256,1,1) block=(512,1,1) lds=163840\n"
    txt += '.amdgcn_target "amdgcn-amd-amdhsa--gfx950"\n.text\n'
    txt += a.render()
    txt += '.section .rodata,"a"\n.p2align 6\n' + descriptor(KNAME)
    open(path, "w").write(txt)

if __name__ == "__main__":
    main(sys.argv[1], len(sys.argv) > 2)
```
